```python
import torch

def _softmax(x, axis=-1):
    return torch.softmax(x, dim=axis)
def _gelu(x):
    return torch.nn.functional.gelu(x, approximate="tanh")
def _silu(x):
    return torch.nn.functional.silu(x)
def _sigmoid(x):
    return torch.sigmoid(x)
def _layernorm(x, axis=-1, eps=1e-5):
    m = x.mean(dim=axis, keepdim=True)
    v = x.var(dim=axis, keepdim=True, unbiased=False)
    return (x - m) / torch.sqrt(v + eps)
def _scatter_add(tgt, idx, src, axis=0):
    return tgt.clone().index_add_(axis, idx, src)
def _segment_sum(src, seg, n):
    out = torch.zeros((n,) + src.shape[1:], dtype=src.dtype)
    return out.index_add_(0, seg, src)
def _pad(x, pw):
    flat = tuple(v for pair in reversed(pw) for v in pair)
    return torch.nn.functional.pad(x, flat)

kernel_name = 'sequential_preLN__ssm_conv_h3__geglu_ffn__prompt'

def setup_inputs():

    _w = (lambda a: (lambda t: t.to(torch.bfloat16) if t.is_floating_point() else t)(torch.as_tensor(a)))
    def _A_setup():
        B, S, D = 1, 2048, 512
        ks = 4
        return {
            "q": _w((lambda *s: torch.randn(*s, dtype=torch.bfloat16) * 0.05)(B, S, D)),
            "k": _w((lambda *s: torch.randn(*s, dtype=torch.bfloat16) * 0.4)(B, S, D)),
            "v": _w((lambda *s: torch.randn(*s, dtype=torch.bfloat16) * 0.4)(B, S, D)),
            "shift_k": _w((lambda *s: torch.randn(*s, dtype=torch.bfloat16) * 0.4)(D, ks) * 0.5),
            "ssm_k": _w((lambda *s: torch.randn(*s, dtype=torch.bfloat16) * 0.4)(D, S) * (1.0 / S ** 0.5)),
            "ssm_D": _w((lambda *s: torch.randn(*s, dtype=torch.bfloat16) * 0.4)(D)),
        }
    _A_in = _A_setup()

    def _B_setup():
        B, S, D, F = 1, 2048, 512, 1792
        return {
            "x": _w((lambda *s: torch.randn(*s, dtype=torch.bfloat16) * 0.05)(B, S, D)),
            "w_gate": _w((lambda *s: torch.randn(*s, dtype=torch.bfloat16) * 0.05)(D, F)),
            "w_up": _w((lambda *s: torch.randn(*s, dtype=torch.bfloat16) * 0.05)(D, F)),
            "w_down": _w((lambda *s: torch.randn(*s, dtype=torch.bfloat16) * 0.05)(F, D)),
        }
    _B_in = _B_setup()

    return {
        "A_q": _A_in["q"],
        "A_k": _A_in["k"],
        "A_v": _A_in["v"],
        "A_shift_k": _A_in["shift_k"],
        "A_ssm_k": _A_in["ssm_k"],
        "A_ssm_D": _A_in["ssm_D"],
        "B_x": _B_in["x"],
        "B_w_gate": _B_in["w_gate"],
        "B_w_up": _B_in["w_up"],
        "B_w_down": _B_in["w_down"],
    }

def reference(A_q, A_k, A_v, A_shift_k, A_ssm_k, A_ssm_D, B_x, B_w_gate, B_w_up, B_w_down):
    def _A_ref(q, k, v, shift_k, ssm_k, ssm_D):
        B, S, D = q.shape
        ks = shift_k.shape[-1]
        k_pad = _pad(k, ((0, 0), (ks - 1, 0), (0, 0)))
        k_shift = torch.zeros_like(k)
        for t in range(ks):
            k_shift = k_shift + k_pad[:, t:t + S, :] * shift_k[:, ks - 1 - t][None, None, :]
        kv = k_shift * v
        L = 2 * S
        kv_pad = _pad(kv, ((0, 0), (0, S), (0, 0)))
        kf_pad = _pad(ssm_k, ((0, 0), (0, S)))
        kv_f = (lambda x, axes=(-2,-1): torch.fft.rfft2(x.float(), dim=axes))(kv_pad[:, None, :, :], axes=(1, 2))
        kf_f = (lambda x, axes=(-2,-1): torch.fft.rfft2(x.float(), dim=axes))(kf_pad[:, None, :], axes=(1, 2))
        kf_f = (lambda x, *d: x.permute(*d))(kf_f, 1, 2, 0)
        y_f = kv_f * kf_f[None, :, :, :]
        y = (lambda x, s, axes=(-2,-1): torch.fft.irfft2(x, s=s, dim=axes).to(torch.bfloat16))(y_f, (1, L), axes=(1, 2))[:, 0, :S, :]
        y = y + kv * ssm_D[None, None, :]
        return q * y

    def _B_ref(x, w_gate, w_up, w_down):
        return (_gelu(x @ w_gate) * (x @ w_up)) @ w_down

    x = A_q
    h = x + _A_ref(_layernorm(x, axis=-1), A_k, A_v, A_shift_k, A_ssm_k, A_ssm_D)
    h2 = h + _B_ref(_layernorm(h, axis=-1), B_w_gate, B_w_up, B_w_down)
    return h2
```

```python
class Asm:
    def __init__(self):
        self.lines = []
        self.nlabel = 0
    def __call__(self, s):
        for l in s.strip('\n').split('\n'):
            l = l.strip()
            if l:
                self.lines.append(('' if l.endswith(':') or l.startswith('.') else '    ') + l)
    def label(self, base):
        self.nlabel += 1
        return f"L_{base}_{self.nlabel}"
    def text(self):
        return '\n'.join(self.lines) + '\n'

def v(i, n=1):
    return f"v{i}" if n == 1 else f"v[{i}:{i+n-1}]"
def s(i, n=1):
    return f"s{i}" if n == 1 else f"s[{i}:{i+n-1}]"

def srd(a, d, base, nbytes, add=None):
    if add is None:
        a(f"s_mov_b32 s{d}, s{base}\ns_mov_b32 s{d+1}, s{base+1}")
    else:
        a(f"s_add_u32 s{d}, s{base}, {add}\ns_addc_u32 s{d+1}, s{base+1}, 0")
    a(f"s_mov_b32 s{d+2}, {nbytes}\ns_mov_b32 s{d+3}, 0x00020000")

def kernel_head(a, name):
    a(f".globl {name}\n.p2align 8\n.type {name},@function\n{name}:")

def kernel_desc(name, vgpr, accum, sgpr=102):
    return f""".p2align 6
.amdhsa_kernel {name}
  .amdhsa_next_free_vgpr {vgpr}
  .amdhsa_next_free_sgpr {sgpr}
  .amdhsa_accum_offset {accum}
  .amdhsa_group_segment_fixed_size 0
  .amdhsa_kernarg_size 104
  .amdhsa_user_sgpr_count 2
  .amdhsa_user_sgpr_kernarg_segment_ptr 1
  .amdhsa_system_sgpr_workgroup_id_x 1
.end_amdhsa_kernel
"""
```

```python
from asm import *
WS_UT = 0
WS_XT = 2 << 20
WS_ST = 4 << 20
WS_CS = (4 << 20) + 65536
WS_HT = 5 << 20
WS_G  = 8 << 20
WS_TS = 16 << 20
Q, K, V, SHK, SSK, SSD, BX, WG, WU, WD, OUT, DBG, WS = [4 + 2 * i for i in range(13)]
ST = "sc1"

def load_args(a):
    a("s_load_dwordx16 s[4:19], s[0:1], 0\ns_load_dwordx8 s[20:27], s[0:1], 64\ns_load_dwordx2 s[28:29], s[0:1], 96")

def stamp(a, cfg, slot, tmp=96):
    if not cfg.get('ts'): return
    a(f"s_memrealtime s[{tmp}:{tmp+1}]\ns_waitcnt lgkmcnt(0)\nv_writelane_b32 v255, s{tmp}, {slot}")

def stamp_flush(a, cfg, kidx):
    if not cfg.get('ts'): return
    L = a.label('tsf')
    srd(a, 92, WS, 1 << 20, add=WS_TS)
    a(f"""s_lshl_b32 s96, s2, 9
    s_add_u32 s96, s96, {kidx * 256 * 512}
    v_lshrrev_b32 v253, 6, v0
    v_and_b32 v254, 63, v0
    v_lshlrev_b32 v253, 6, v253
    v_lshl_add_u32 v253, v254, 2, v253
    v_cmp_gt_u32 vcc, 16, v254
    s_and_saveexec_b64 s[98:99], vcc
    buffer_store_dword v255, v253, s[92:95], s96 offen
    s_mov_b64 exec, s[98:99]""")

def bf16_round_stats(a, vs, vq, vo, t0, t1, n):
    inv = {512: "0x3b000000"}[n]
    a(f"""v_mul_f32 v{vs}, {inv}, v{vs}
    v_mul_f32 v{vq}, {inv}, v{vq}
    v_fma_f32 v{vq}, -v{vs}, v{vs}, v{vq}
    v_max_f32 v{vq}, 0, v{vq}
    v_cvt_pk_bf16_f32 v{t0}, v{vq}, v{vq}
    v_lshlrev_b32 v{t0}, 16, v{t0}
    v_add_f32 v{t0}, 0x3727c5ac, v{t0}
    v_cvt_pk_bf16_f32 v{t0}, v{t0}, v{t0}
    v_lshlrev_b32 v{t0}, 16, v{t0}
    v_sqrt_f32 v{t0}, v{t0}
    s_nop 0
    v_cvt_pk_bf16_f32 v{vo}, v{vs}, v{t0}""")

def p0_body(a, cfg):
    SQ, SK, SV, SS, SW = 32, 36, 40, 44, 48
    srd(a, SQ, Q, 2 << 20); srd(a, SK, K, 2 << 20); srd(a, SV, V, 2 << 20); srd(a, SS, SHK, 4096); srd(a, SW, WS, 5 << 20)
    a("""s_and_b32 s52, s2, 7
    s_lshr_b32 s53, s2, 3
    s_lshr_b32 s54, s53, 2
    s_lshl_b32 s52, s52, 3
    s_add_u32 s52, s52, s54          ; rb
    s_and_b32 s53, s53, 3            ; cq
    s_movk_i32 s55, 0x1000
    v_and_b32 v1, 3, v0              ; rg
    v_lshrrev_b32 v2, 2, v0          ; w*16+pl
    s_lshl_b32 s54, s53, 6
    v_add_u32 v2, s54, v2            ; pair p
    s_lshl_b32 s56, s52, 2
    v_add_u32 v1, s56, v1
    v_lshlrev_b32 v3, 13, v1         ; row0*1024
    v_lshl_add_u32 v3, v2, 2, v3     ; voff
    v_subrev_u32 v4, 0xc00, v3
    v_lshlrev_b32 v5, 4, v2""")
    KR, VR, XR, WR = 8, 19, 27, 36
    SA = 40
    a(f"buffer_load_dwordx4 {v(WR,4)}, v5, {s(SS,4)}, 0 offen")
    for j in range(3):
        a(f"buffer_load_dword v{KR+j}, v4, {s(SK,4)}, 0 offen offset:{1024*j}")
    for j in range(8):
        so = '0' if j < 4 else 's55'
        a(f"buffer_load_dword v{KR+3+j}, v3, {s(SK,4)}, {so} offen offset:{1024*(j&3)}")
        a(f"buffer_load_dword v{VR+j}, v3, {s(SV,4)}, {so} offen offset:{1024*(j&3)}")
    for j in range(8):
        so = '0' if j < 4 else 's55'
        a(f"buffer_load_dword v{XR+j}, v3, {s(SQ,4)}, {so} offen offset:{1024*(j&3)}")
    a(f"""s_lshl_b32 s57, s52, 5
    s_lshl_b32 s58, s53, 3
    s_add_u32 s57, s57, s58
    v_lshrrev_b32 v6, 5, v0
    v_add_u32 v6, s57, v6
    v_and_b32 v7, 31, v0
    v_lshlrev_b32 v7, 4, v7
    v_lshl_add_u32 v7, v6, 10, v7
    buffer_load_dwordx4 {v(SA,4)}, v7, {s(SQ,4)}, 0 offen
    buffer_load_dwordx4 {v(SA+4,4)}, v7, {s(SQ,4)}, 0 offen offset:512""")
    npf = cfg.get('p0_extra', lambda a: 0)(a)
    a(f"""v_lshlrev_b32 v4, 13, v2         ; d*4096 (d=2p)
    v_lshl_add_u32 v5, v1, 4, v4
    v_lshrrev_b32 v7, 4, v1
    v_and_b32 v7, 1, v7
    v_xor_b32 v7, v7, v1
    v_lshl_add_u32 v4, v7, 4, v4
    v_add_u32 v5, {WS_XT}, v5
    v_lshlrev_b32 v6, 2, v6
    v_add_u32 v6, {WS_ST}, v6
    s_mov_b32 s59, 0xffff0000
    s_mov_b32 s60, 0x05040100
    s_mov_b32 s61, 0x07060302""")
    WP, KP, UP, TP = 48, 56, 78, 94
    OU, OX = 96, 104
    a(f"s_waitcnt vmcnt({24+2+npf})")
    for j in range(4):
        for c in range(2):
            r = WR + 2 * c + (j >> 1)
            a(f"v_lshlrev_b32 v{WP+2*j+c}, 16, v{r}" if j % 2 == 0 else f"v_and_b32 v{WP+2*j+c}, s59, v{r}")
    def unpack(dst, src):
        a(f"v_lshlrev_b32 v{dst}, 16, v{src}\nv_and_b32 v{dst+1}, s59, v{src}")
    for j in range(3):
        unpack(KP + 2 * j, KR + j)
    for j in range(8):
        a(f"s_waitcnt vmcnt({24+2+npf-2*(j+1)})")
        unpack(KP + 2 * (3 + j), KR + 3 + j)
        unpack(TP, VR + j)
        u = v(UP + 2 * j, 2)
        a(f"v_pk_mul_f32 {u}, {v(KP+2*j,2)}, {v(WP+6,2)}")
        for t in (1, 2, 3):
            a(f"v_pk_fma_f32 {u}, {v(KP+2*(j+t),2)}, {v(WP+2*(3-t),2)}, {u}")
        a(f"v_pk_mul_f32 {u}, {u}, {v(TP,2)}")
    for c in range(2):
        for i in range(4):
            a(f"v_cvt_pk_bf16_f32 v{OU+4*c+i}, v{UP+2*(7-2*i)+c}, v{UP+2*(6-2*i)+c}")
    a(f"""buffer_store_dwordx4 {v(OU,4)}, v4, {s(SW,4)}, 0 offen {ST}
    buffer_store_dwordx4 {v(OU+4,4)}, v4, {s(SW,4)}, s55 offen {ST}
    s_waitcnt vmcnt({2+2+npf})""")
    for c in range(2):
        for i in range(4):
            a(f"v_perm_b32 v{OX+4*c+i}, v{XR+2*i+1}, v{XR+2*i}, s{60+c}")
    a(f"""buffer_store_dwordx4 {v(OX,4)}, v5, {s(SW,4)}, 0 offen {ST}
    buffer_store_dwordx4 {v(OX+4,4)}, v5, {s(SW,4)}, s55 offen {ST}
    v_mov_b32 v8, 0
    v_mov_b32 v9, 0
    v_mov_b32 v10, 0x3f803f80
    s_waitcnt vmcnt({4+npf})""")
    for i in range(8):
        a(f"v_dot2c_f32_bf16 v8, v{SA+i}, v10\nv_dot2c_f32_bf16 v9, v{SA+i}, v{SA+i}")
    a("s_nop 2")
    for ctl in ("quad_perm:[1,0,3,2]", "quad_perm:[2,3,0,1]", "row_half_mirror", "row_mirror"):
        a(f"""v_add_f32_dpp v8, v8, v8 {ctl} row_mask:0xf bank_mask:0xf
        v_add_f32_dpp v9, v9, v9 {ctl} row_mask:0xf bank_mask:0xf
        s_nop 0""")
    a("""v_mov_b32 v10, v8
    v_mov_b32 v11, v9
    s_nop 1
    v_permlane16_swap_b32 v8, v10
    v_permlane16_swap_b32 v9, v11
    v_add_f32 v8, v8, v10
    v_add_f32 v9, v9, v11""")
    bf16_round_stats(a, 8, 9, 12, 10, 11, 512)
    a(f"""v_and_b32 v7, 31, v0
    v_cmp_eq_u32 vcc, 0, v7
    s_and_saveexec_b64 s[62:63], vcc
    buffer_store_dword v12, v6, {s(SW,4)}, 0 offen {ST}
    s_mov_b64 exec, s[62:63]""")

P1_KC0 = 0
P1_KC1 = 4224
P1_U = 8448
P1_X = 13056
P1_CH = 17152
P1_ST = 2 * P1_CH
P1_RED = P1_ST + 8192
P1_CSR = P1_RED + 16384
P1_LDS = P1_CSR + 256

def p1_body(a, cfg):
    SKR, SW, SD, SH = 32, 36, 40, 44
    A0, B0, C0 = 24, 152, 216
    a("""v_lshrrev_b32 v1, 6, v0
    v_and_b32 v2, 63, v0             ; lane
    s_nop 0
    v_readfirstlane_b32 s48, v1      ; wave
    s_lshr_b32 s49, s48, 1           ; ch
    s_and_b32 s50, s48, 1            ; half
    s_lshl_b32 s51, s2, 1
    s_add_u32 s51, s51, s49          ; d
    s_lshl_b32 s52, s51, 12          ; d*4096""")
    srd(a, SKR, SSK, 4096, add='s52'); srd(a, SW, WS, 5 << 20); srd(a, SD, SSD, 1024); srd(a, SH, WS, 2 << 20, add=WS_HT)
    a(f"""s_mul_i32 s53, s49, {P1_CH}
    s_mul_i32 s54, s50, {P1_KC1}
    s_add_u32 s54, s54, s53
    s_lshl_b32 s55, s50, 2           ; 4*half
    v_lshlrev_b32 v3, 2, v2
    v_add_u32 v3, s55, v3
    v_subrev_u32 v3, 32, v3
    v_lshlrev_b32 v4, 4, v2          ; 16*l
    v_add_u32 v5, s55, v4
    s_mov_b32 m0, s54
    s_add_u32 s56, s54, 32
    buffer_load_dword v3, {s(SKR,4)}, 0 offen lds
    s_mov_b32 m0, s56
    s_mul_i32 s57, s50, {P1_X - P1_U - 512}
    s_add_u32 s57, s57, s53""")
    for j in range(4):
        a(f"buffer_load_dwordx4 v5, {s(SKR,4)}, 0 offen offset:{1024*j} lds")
    a(f"""s_add_u32 s57, s57, {P1_U + 512}
    s_mov_b32 m0, s57
    s_lshl_b32 s58, s50, 21
    s_add_u32 s58, s58, s52""")
    cfg.get('p1_wait', lambda a: None)(a)
    for j in range(4):
        a(f"buffer_load_dwordx4 v4, {s(SW,4)}, s58 offen offset:{1024*j} lds {cfg.get('ld','')}")
    a(f"""s_lshl_b32 s59, s48, 11
    s_add_u32 s60, s59, {P1_ST}
    s_mov_b32 m0, s60
    s_add_u32 s59, s59, {WS_ST}
    s_lshl_b32 s61, s51, 1
    buffer_load_dwordx4 v4, {s(SW,4)}, s59 offen lds {cfg.get('ld','')}
    buffer_load_dwordx4 v4, {s(SW,4)}, s59 offen offset:1024 lds {cfg.get('ld','')}
    v_mov_b32 v6, 0
    buffer_load_ushort v23, v6, {s(SD,4)}, s61 offen""")
    a(f"""s_lshr_b32 s64, s2, 3
    s_cmp_ge_u32 s64, 14
    s_cselect_b32 s68, s{WU}, s{WG}
    s_cselect_b32 s69, s{WU+1}, s{WG+1}
    s_cselect_b32 s65, 14, 0
    s_cselect_b32 s76, {1792*4}, 0
    s_cmp_lt_u32 s64, 28
    s_cselect_b32 s70, {512*3584}, 0
    s_cselect_b32 s74, {3584*4}, 0
    s_mov_b32 s71, 0x00020000
    s_mov_b32 s75, 0x00020000
    s_add_u32 s72, s{WS}, {WS_CS}
    s_addc_u32 s73, s{WS+1}, 0
    s_sub_u32 s64, s64, s65
    s_lshl_b32 s64, s64, 2
    s_and_b32 s65, s2, 3
    s_add_u32 s64, s64, s65
    s_bfe_u32 s65, s2, 0x10002
    s_mul_i32 s65, s65, 56
    s_add_u32 s64, s64, s65
    s_lshl_b32 s65, s64, 6
    s_add_u32 s76, s76, s65
    s_lshl_b32 s64, s64, 5
    s_mul_i32 s65, s48, {128*3584}
    s_add_u32 s64, s64, s65
    v_lshrrev_b32 v7, 1, v2
    v_mul_u32_u24 v7, 3584, v7
    v_and_b32 v8, 1, v2
    v_lshl_add_u32 v7, v8, 4, v7""")
    for j in range(4):
        a(f"buffer_load_dwordx4 a[{4*j}:{4*j+3}], v7, s[68:71], s64 offen\ns_add_u32 s64, s64, {32*3584}")
    a("""v_mov_b32 v7, 0x3f80
    v_lshlrev_b32 v8, 4, v8
    v_lshlrev_b32 v7, v8, v7
    v_bfe_u32 v8, v2, 1, 2""")
    for j in range(4):
        a(f"v_cmp_eq_u32 vcc, {j}, v8\ns_nop 1\nv_cndmask_b32 v{248+j}, 0, v7, vcc")
    npf = 4 + cfg.get('p1_extra', lambda a: 0)(a)
    a(f"""v_mov_b32 v7, 0
    v_lshlrev_b32 v8, 3, v2
    v_add_u32 v8, s53, v8
    ds_write_b64 v8, v[6:7] offset:{P1_U}
    v_and_b32 v9, 15, v2             ; m / n
    v_lshrrev_b32 v10, 4, v2         ; g
    v_add_u32 v11, 1, v9             ; m+1
    v_and_b32 v12, 1, v11
    v_lshlrev_b32 v12, 1, v12
    v_lshrrev_b32 v11, 1, v11
    v_and_b32 v13, 1, v11
    v_mul_u32_u24 v13, {P1_KC1}, v13
    v_and_b32 v11, 14, v11
    v_lshl_add_u32 v11, v10, 4, v11
    v_lshl_add_u32 v13, v11, 2, v13
    s_lshl_b32 s62, s50, 8
    s_add_u32 s62, s62, s53
    v_add_u32 v13, s62, v13
    v_lshlrev_b32 v14, 1, v9
    v_lshlrev_b32 v15, 2, v10
    v_sub_u32 v14, v14, v15          ; 2n-4g
    s_lshl_b32 s63, s50, 4
    s_sub_u32 s63, 33, s63
    v_add_u32 v14, s63, v14""")
    for rho in range(4):
        a(f"""v_subrev_u32 v15, {rho}, v14
        v_bfe_u32 v20, v15, 4, 1
        v_xor_b32 v15, v15, v20
        v_lshlrev_b32 v15, 4, v15
        v_add_u32 v{16+rho}, s53, v15""")
    for i in range(32):
        a(f"v_mov_b32 v{C0+i}, 0")
    a(f"s_waitcnt vmcnt({7+npf})\ns_barrier")
    stamp(a, cfg, 1)
    for p in range(8):
        for i in range(8):
            a(f"ds_read_b64 {v(A0+16*p+2*i,2)}, v13 offset:{512*p+8*i}")
        a(f"ds_read_b32 v{B0+32+p}, v13 offset:{512*p+64}")
        if p >= 1:
            a("s_waitcnt lgkmcnt(9)")
            for i in range(16):
                hi = A0+16*(p-1)+i+1 if i < 15 else B0+32+p-1
                a(f"v_alignbyte_b32 v{A0+16*(p-1)+i}, v{hi}, v{A0+16*(p-1)+i}, v12")
    a(f"s_waitcnt vmcnt({npf}) lgkmcnt(0)\ns_barrier")
    stamp(a, cfg, 2)
    def rdB(rho, q):
        a(f"ds_read_b128 {v(B0+32*(rho&1)+4*q,4)}, v{16+rho} offset:{P1_U+512*q}")
    for q in range(8): rdB(0, q)
    for i in range(16):
        hi = A0+16*7+i+1 if i < 15 else B0+32+7
        a(f"v_alignbyte_b32 v{A0+16*7+i}, v{hi}, v{A0+16*7+i}, v12")
    for rho in range(4):
        cnt = 0
        for q in range(8):
            nxt = min(cnt, 8) if rho < 3 else 0
            if rho == 0 or q == 0:
                a(f"s_waitcnt lgkmcnt({(7-q)+nxt if rho == 0 else 0})")
            for p in range(8 - q):
                a(f"v_mfma_f32_16x16x32_bf16 {v(C0+4*(p+q),4)}, {v(A0+16*p+4*rho,4)}, {v(B0+32*(rho&1)+4*q,4)}, {v(C0+4*(p+q),4)}")
                if rho < 3 and q >= 1 and cnt < 8 and p % 2 == 0:
                    rdB(rho + 1, cnt); cnt += 1
        assert rho == 3 or cnt == 8
    stamp(a, cfg, 3)
    a(f"s_waitcnt vmcnt({npf-4})")
    for j in range(4):
        a(f"v_mfma_f32_16x16x32_bf16 {v(B0,4)}, v[248:251], a[{4*j}:{4*j+3}], {v(B0,4) if j else 0}")
    L = a.label('p1sw')
    a(f"""v_lshlrev_b32 v14, 2, v9
    v_add_u32 v14, v14, v10          ; 4n+g
    s_lshl_b32 s63, s50, 11
    s_add_u32 s62, s63, s53
    v_lshlrev_b32 v15, 3, v14
    v_add_u32 v15, s62, v15          ; X address
    v_lshrrev_b32 v20, 3, v9
    v_lshlrev_b32 v20, 1, v20
    v_xor_b32 v20, v20, v14
    v_xor_b32 v20, 1, v20
    v_lshlrev_b32 v20, 3, v20
    v_add_u32 v20, s62, v20          ; U address
    s_lshl_b32 s63, s63, 1
    v_lshlrev_b32 v21, 4, v14
    v_add_u32 v21, s63, v21
    s_lshl_b32 s63, s48, 12
    v_add_u32 v22, s63, v4
    v_xor_b32 v11, 0x1000, v22""")
    XR, UR, SR, RR = A0, A0 + 8, A0 + 16, A0 + 32
    for t in range(4):
        a(f"""ds_read_b64 {v(XR+2*t,2)}, v15 offset:{P1_X+512*t}
        ds_read_b64 {v(UR+2*t,2)}, v20 offset:{P1_U+512+512*t}
        ds_read_b128 {v(SR+4*t,4)}, v21 offset:{P1_ST+1024*t}""")
    a(f"s_cmp_eq_u32 s50, 0\ns_cbranch_scc1 {L}")
    for i in range(16):
        a(f"v_swap_b32 v{C0+i}, v{C0+16+i}")
    a(f"{L}:")
    for t in range(4):
        a(f"ds_write_b128 v22, {v(C0+16+4*t,4)} offset:{P1_RED+1024*t}")
    for ctl in ("quad_perm:[2,3,0,1]", "row_ror:4", "row_ror:8"):
        for j in range(4):
            a(f"v_add_f32_dpp v{B0+j}, v{B0+j}, v{B0+j} {ctl} row_mask:0xf bank_mask:0xf")
    a(f"""v_and_b32 v14, 1, v2
    v_and_b32 v15, 1, v10
    v_lshl_add_u32 v14, v14, 1, v15
    v_lshl_add_u32 v14, v1, 2, v14
    v_lshlrev_b32 v14, 4, v14
    v_lshlrev_b32 v13, 2, v9
    ds_write_b128 v14, {v(B0,4)} offset:{P1_CSR}""")
    a(f"""v_and_b32 v14, 7, v9
    s_and_b32 s63, s51, 7
    v_xor_b32 v14, s63, v14
    v_lshlrev_b32 v14, 5, v14
    v_lshrrev_b32 v15, 1, v10
    v_lshl_add_u32 v14, v15, 4, v14
    v_lshrrev_b32 v15, 3, v9
    v_and_b32 v20, 1, v10
    v_lshl_add_u32 v15, v20, 1, v15
    v_lshl_add_u32 v14, v15, 17, v14
    s_lshl_b32 s62, s50, 20
    s_lshl_b32 s63, s51, 8
    s_add_u32 s62, s62, s63
    s_add_u32 s63, s62, 0x80000
    s_mov_b32 s59, 0xffff0000
    v_lshlrev_b32 v23, 16, v23       ; D
    s_waitcnt lgkmcnt(0)
    s_barrier""")
    for t in range(4):
        a(f"ds_read_b128 {v(RR+4*t,4)}, v11 offset:{P1_RED+1024*t}")
    for t in range(4):
        a(f"ds_read_b32 v{B0+4+t}, v13 offset:{P1_CSR+64*t}")
    T = A0 + 48
    XN = T + 16
    for t in range(4):
        for j in range(4):
            e = 4 * t + j
            xs = XR + 2 * t + (j >> 1); us = UR + 2 * t + 1 - (j >> 1)
            a(f"v_lshlrev_b32 v{T+e}, 16, v{xs}" if j % 2 == 0 else f"v_and_b32 v{T+e}, s59, v{xs}")
            a(f"""v_and_b32 v20, s59, v{SR+e}
            v_rcp_f32 v20, v20
            v_lshlrev_b32 v21, 16, v{SR+e}
            v_sub_f32 v21, v{T+e}, v21
            v_mul_f32 v{XN+e}, v21, v20""")
            a(f"v_and_b32 v21, s59, v{us}" if j % 2 == 0 else f"v_lshlrev_b32 v21, 16, v{us}")
            a(f"v_fmac_f32 v{C0+e}, v21, v23")
    a("s_waitcnt lgkmcnt(0)")
    for e in range(16):
        a(f"v_add_f32 v{C0+e}, v{C0+e}, v{RR+e}\nv_fmac_f32 v{T+e}, v{XN+e}, v{C0+e}")
    for e in range(8):
        a(f"v_cvt_pk_bf16_f32 v{XR+e}, v{T+2*e}, v{T+2*e+1}")
    a(f"""s_nop 1
    v_permlane16_swap_b32 v{XR}, v{XR+2}
    v_permlane16_swap_b32 v{XR+1}, v{XR+3}
    v_permlane16_swap_b32 v{XR+4}, v{XR+6}
    v_permlane16_swap_b32 v{XR+5}, v{XR+7}
    buffer_store_dwordx4 {v(XR,4)}, v14, {s(SH,4)}, s62 offen {ST}
    buffer_store_dwordx4 {v(XR+4,4)}, v14, {s(SH,4)}, s63 offen {ST}
    v_add_f32 v{B0+4}, v{B0+4}, v{B0+5}
    v_add_f32 v{B0+6}, v{B0+6}, v{B0+7}
    v_and_b32 v15, 0xf0, v0
    v_lshl_add_u32 v13, v15, 12, v13
    v_add_f32 v{B0+4}, v{B0+4}, v{B0+6}
    buffer_store_dword v{B0+4}, v13, s[72:75], s76 offen {ST}""")
```

```python
from asm import *
from p01 import *
NS = 6
P2_H, P2_G, P2_U = 0, NS * 8192, 2 * NS * 8192
P2_ST = 3 * NS * 8192
P2_LDS = P2_ST + 1024
P2_VGPR = 200
import struct
def fl(x): return hex(struct.unpack('<I', struct.pack('<f', x))[0])

def weave(a, mf, fill, start=0, per=1):
    fill = list(fill)
    for i, m in enumerate(mf):
        a(m)
        if i >= start:
            for _ in range(per):
                if fill: a(fill.pop(0))
    for f in fill: a(f)

def p2_body(a, cfg):
    SH, SG, SU, SO, SC, SD = 32, 36, 40, 44, 48, 52
    AB, AG, AU = 4, 8, 10
    VH, VW, VL = 12, 13, 14
    S0, T0 = 16, 20
    CS, FR, AC = 24, 40, 104
    EP = 168
    a(f"""v_lshrrev_b32 v1, 6, v0
    v_and_b32 v2, 63, v0
    s_and_b32 s56, s2, 7
    v_readfirstlane_b32 s60, v1      ; wave
    s_lshr_b32 s57, s2, 3
    s_and_b32 s58, s56, 3
    s_lshl_b32 s58, s58, 2
    s_and_b32 s59, s57, 3
    s_add_u32 s58, s58, s59          ; tb
    s_lshr_b32 s56, s56, 2
    s_mul_i32 s56, s56, 7
    s_lshr_b32 s59, s57, 2
    s_add_u32 s59, s59, s56          ; ft
    s_lshl_b32 s61, s58, 17
    s_add_u32 s61, s61, {WS_HT}""")
    srd(a, SH, WS, 131072, add='s61'); srd(a, SG, WG, 512 * 3584); srd(a, SU, WU, 512 * 3584)
    a(f"""v_lshlrev_b32 v{VH}, 4, v0        ; 16l + 1024w
    v_lshrrev_b32 v3, 4, v0
    v_bfe_u32 v{VW}, v0, 1, 3
    v_xor_b32 v{VW}, v{VW}, v3
    v_and_b32 v{VW}, 7, v{VW}
    v_lshlrev_b32 v{VW}, 5, v{VW}
    v_and_b32 v15, 1, v0
    v_lshl_add_u32 v{VW}, v15, 4, v{VW}
    v_mul_u32_u24 v3, 3584, v3
    s_lshl_b32 s62, s59, 8
    v_add3_u32 v{VW}, v{VW}, v3, s62
    s_lshl_b32 s63, s60, 10
    s_mov_b32 s64, 0
    s_mov_b32 s65, 0""")
    LD = cfg.get('ld', '')
    def dma(st):
        sl = st % NS
        return [f"s_add_u32 m0, s63, {P2_G + sl*8192}\ns_nop 0\nbuffer_load_dwordx4 v{VW}, {s(SG,4)}, s65 offen lds",
                f"s_add_u32 m0, s63, {P2_U + sl*8192}\ns_nop 0\nbuffer_load_dwordx4 v{VW}, {s(SU,4)}, s65 offen lds",
                f"s_add_u32 m0, s63, {P2_H + sl*8192}\ns_add_u32 s65, s65, {32*3584}\nbuffer_load_dwordx4 v{VH}, {s(SH,4)}, s64 offen lds {LD}\ns_add_u32 s64, s64, 8192"]
    for st in range(NS):
        for x in dma(st): a(x)
    srd(a, SO, WS, 7 << 20, add=WS_G); srd(a, SC, WS, 3584 * 4, add=WS_CS); srd(a, SD, WD, 1792 * 1024)
    a(f"""s_and_b32 s66, s60, 1            ; th
    s_lshr_b32 s67, s60, 1           ; fq
    v_lshrrev_b32 v3, 2, v2          ; row = 4g+r
    v_and_b32 v15, 7, v3
    v_lshlrev_b32 v15, 5, v15
    v_lshl_add_u32 v15, v3, 8, v15
    v_and_b32 v3, 3, v2
    v_lshl_add_u32 v15, v3, 3, v15   ; base
    s_lshl_b32 s68, s66, 2
    s_add_u32 s68, s68, s67          ; 4th+fq
    s_lshl_b32 s69, s68, 5
    v_xor_b32 v{AB}, s69, v15
    v_xor_b32 v{AB+1}, 32, v{AB}
    v_xor_b32 v{AB+2}, 64, v{AB}
    v_xor_b32 v{AB+3}, 0x60, v{AB}
    s_lshl_b32 s69, s67, 6
    v_xor_b32 v15, s69, v15
    v_add_u32 v{AG}, {P2_G}, v15
    v_xor_b32 v{AG+1}, 32, v{AG}
    v_add_u32 v{AU}, {P2_U}, v15
    v_xor_b32 v{AU+1}, 32, v{AU}
    v_lshlrev_b32 v{VL}, 4, v2
    s_mov_b32 s70, 0xffff0000
    s_lshl_b32 s71, s59, 9
    s_lshl_b32 s72, s67, 7
    s_add_u32 s71, s71, s72
    s_add_u32 s72, s71, {1792*4}
    s_lshl_b32 s73, s57, 16
    s_lshl_b32 s74, s58, 3
    s_lshl_b32 s75, s59, 2
    s_add_u32 s75, s75, s67          ; ks""")
    for b in range(4):
        a(f"s_xor_b32 s76, s68, {b}\ns_add_u32 s76, s76, s74\ns_mul_i32 s76, s76, 56\ns_add_u32 s76, s76, s75\ns_lshl_b32 s{80+b}, s76, 10")
    for i in range(4): a(f"v_mov_b32 v{S0+i}, 0")
    def reads(st):
        o = (st % NS) * 8192; f = FR + 32 * (st & 1); r = []
        order = [(f, AG), (f+16, AB), (f+4, AG+1), (f+20, AB+1), (f+8, AU), (f+24, AB+2), (f+12, AU+1), (f+28, AB+3)]
        for d, ad in order:
            r += [f"ds_read_b64_tr_b16 {v(d,2)}, v{ad} offset:{o}", f"ds_read_b64_tr_b16 {v(d+2,2)}, v{ad} offset:{o+4096}"]
        return r
    def stats(st):
        f = FR + 32 * (st & 1) + 16; r = []
        for i in range(4):
            t = T0 + 2 * (i & 1)
            r += [f"v_lshlrev_b32 v{t}, 16, v{f+i}", f"v_and_b32 v{t+1}, s70, v{f+i}",
                  f"v_add_f32 v{S0}, v{S0}, v{t}", f"v_add_f32 v{S0+1}, v{S0+1}, v{t+1}",
                  f"v_fmac_f32 v{S0+2}, v{t}, v{t}", f"v_fmac_f32 v{S0+3}, v{t+1}, v{t+1}"]
        return r
    def mfmas(st):
        f = FR + 32 * (st & 1)
        return [f"v_mfma_f32_16x16x32_bf16 {v(AC+16*b+4*x,4)}, {v(f+4*x,4)}, {v(f+16+4*b,4)}, {v(AC+16*b+4*x,4) if st else 0}"
                for b in range(4) for x in range(4)]
    a(f"s_waitcnt vmcnt({3*(NS-1)})\ns_barrier")
    stamp(a, cfg, 1)
    for x in reads(0): a(x)
    a(f"s_waitcnt vmcnt({3*(NS-2)}) lgkmcnt(0)\ns_barrier")
    for x in dma(NS): a(x)
    extra = 0
    BP = cfg.get('p2_bp', 12)
    for st in range(15):
        mf = mfmas(st); rd = reads(st + 1); sv = stats(st)
        for i in range(BP):
            a(mf[i])
            if i < 8: a(rd[2*i]); a(rd[2*i+1])
            for _ in range(1 if i < 8 else 2): a(sv.pop(0))
        if st < 14:
            a(f"s_waitcnt vmcnt({3*(min(st+NS,15)-(st+2))+extra}) lgkmcnt(0)\ns_barrier")
        else: a("s_waitcnt lgkmcnt(0)")
        fill = []
        if st + 1 + NS <= 15: fill = dma(st + 1 + NS)
        elif st + 1 + NS == 16:
            fill = [f"v_and_b32 v3, 0x30, v2\nv_lshlrev_b32 v15, 7, v0\nbuffer_load_dwordx4 {v(CS,4)}, v3, {s(SC,4)}, s71 offen {LD}",
                    f"buffer_load_dwordx4 {v(CS+4,4)}, v3, {s(SC,4)}, s71 offen offset:64 {LD}",
                    f"buffer_load_dwordx4 {v(CS+8,4)}, v3, {s(SC,4)}, s72 offen {LD}\nbuffer_load_dwordx4 {v(CS+12,4)}, v3, {s(SC,4)}, s72 offen offset:64 {LD}"]
            extra = 4
            if cfg.get('pf_wd', 1):
                fill.append(f"buffer_load_dword v1, v15, {s(SD,4)}, s73 offen"); extra = 5
        for i in range(BP, 16):
            a(mf[i])
            if fill: a(fill.pop(0))
            for _ in range(2):
                if sv: a(sv.pop(0))
        for x in fill + sv: a(x)
    mf = mfmas(15); sv = stats(15)
    b_ = Asm(); bf16_round_stats(b_, S0, S0 + 2, S0 + 1, T0, T0 + 1, 512)
    sv += [f"v_add_f32 v{S0}, v{S0}, v{S0+1}", f"v_add_f32 v{S0+2}, v{S0+2}, v{S0+3}",
           f"v_mov_b32 v{S0+1}, v{S0}", f"v_mov_b32 v{S0+3}, v{S0+2}", "v_and_b32 v3, 15, v2", "s_lshl_b32 s69, s68, 6",
           f"v_permlane16_swap_b32 v{S0}, v{S0+1}", f"v_permlane16_swap_b32 v{S0+2}, v{S0+3}",
           f"v_add_f32 v{S0}, v{S0}, v{S0+1}", f"v_add_f32 v{S0+2}, v{S0+2}, v{S0+3}",
           f"v_mov_b32 v{S0+1}, v{S0}", f"v_mov_b32 v{S0+3}, v{S0+2}", "v_lshl_add_u32 v3, v3, 2, s69", f"v_add_u32 v3, {P2_ST}, v3",
           f"v_permlane32_swap_b32 v{S0}, v{S0+1}", f"v_permlane32_swap_b32 v{S0+2}, v{S0+3}",
           f"v_add_f32 v{S0}, v{S0}, v{S0+1}", f"v_add_f32 v{S0+2}, v{S0+2}, v{S0+3}"]
    sv += [x.strip() for x in b_.lines]
    sv += [f"ds_write_b32 v3, v{S0+1}", "v_xor_b32 v4, 64, v3", "v_xor_b32 v5, 0x80, v3", "v_xor_b32 v6, 0xc0, v3"]
    weave(a, mf[:13], sv, per=5)
    a("s_waitcnt lgkmcnt(0)\ns_barrier")
    weave(a, mf[13:], [f"ds_read_b32 v{T0+b}, v{3+b}" for b in range(1, 4)])
    stamp(a, cfg, 2)
    a(f"v_mov_b32 v{T0}, v{S0+1}\ns_mov_b32 s77, {fl(-2.302208198)}\ns_mov_b32 s78, {fl(-0.1029432397)}\ns_waitcnt vmcnt({extra-4}) lgkmcnt(0)")
    K0 = FR
    for b in range(4):
        a(f"""v_and_b32 v{K0+4*b+1}, s70, v{T0+b}
        v_rcp_f32 v{K0+4*b+2}, v{K0+4*b+1}
        v_lshlrev_b32 v{K0+4*b}, 16, v{T0+b}
        v_mul_f32 v{K0+4*b+1}, v{K0+4*b+1}, v{K0+4*b+1}
        v_mul_f32 v{K0+4*b+3}, v{K0+4*b+2}, v{K0+4*b+2}
        v_mul_f32 v{K0+4*b+3}, s78, v{K0+4*b+3}
        v_mul_f32 v{K0+4*b+3}, v{K0+4*b+3}, v{K0+4*b+2}
        v_mul_f32 v{K0+4*b+2}, s77, v{K0+4*b+2}""")
    for b in range(4):
        c = AC + 16 * b; km = v(K0 + 4 * b, 2); kk = v(K0 + 4 * b + 2, 2); t = EP + 8 * (b & 1); o = EP + 16 + 4 * b
        P = range(4)
        for p in range(8): a(f"v_pk_fma_f32 {v(c+2*p,2)}, {v(CS+2*p,2)}, {km}, {v(c+2*p,2)} op_sel_hi:[1,0,1] neg_lo:[0,1,0] neg_hi:[0,1,0]")
        for p in P: a(f"v_pk_mul_f32 {v(t+2*p,2)}, {v(c+2*p,2)}, {v(c+2*p,2)}")
        for p in P: a(f"v_pk_fma_f32 {v(t+2*p,2)}, {v(t+2*p,2)}, {kk}, {kk} op_sel:[0,1,0] op_sel_hi:[1,1,0]")
        for p in P: a(f"v_pk_mul_f32 {v(t+2*p,2)}, {v(t+2*p,2)}, {v(c+2*p,2)}")
        for p in P: a(f"v_exp_f32 v{t+2*p}, v{t+2*p}\nv_exp_f32 v{t+2*p+1}, v{t+2*p+1}\nv_pk_mul_f32 {v(c+2*p,2)}, {v(c+2*p,2)}, {v(c+8+2*p,2)}")
        for p in P: a(f"v_pk_fma_f32 {v(t+2*p,2)}, {v(t+2*p,2)}, {km}, {km} op_sel:[0,1,1] op_sel_hi:[1,1,1]")
        for p in range(8): a(f"v_rcp_f32 v{t+p}, v{t+p}")
        for p in P: a(f"v_pk_mul_f32 {v(c+2*p,2)}, {v(c+2*p,2)}, {v(t+2*p,2)}")
        for p in P: a(f"v_cvt_pk_bf16_f32 v{o+p}, v{c+2*p}, v{c+2*p+1}")
        a(f"buffer_store_dwordx4 {v(o,4)}, v{VL}, {s(SO,4)}, s{80+b} offen {ST}")

P3_LDS = 163840
P3_VGPR = 216
def p3_body(a, cfg):
    SW, SG, SH, SO = 32, 36, 40, 44
    VW, VL, AA = 4, 6, 8
    FA, AC, GF = 24, 56, 88
    a(f"""v_lshrrev_b32 v1, 6, v0
    v_and_b32 v2, 63, v0
    s_and_b32 s56, s2, 7
    v_readfirstlane_b32 s60, v1      ; wave
    s_lshr_b32 s57, s2, 3
    s_and_b32 s58, s56, 3
    s_lshl_b32 s58, s58, 1
    s_lshr_b32 s56, s56, 2
    s_add_u32 s58, s58, s56
    s_lshl_b32 s58, s58, 2
    s_and_b32 s59, s57, 3
    s_add_u32 s58, s58, s59
    s_lshr_b32 s59, s57, 2           ; d tile (64)
    s_and_b32 s61, s60, 1            ; th
    s_lshr_b32 s62, s60, 1           ; kq""")
    srd(a, SW, WD, 1792 * 1024); srd(a, SG, WS, 7 << 20, add=WS_G)
    a(f"""v_lshrrev_b32 v3, 3, v2          ; row
    v_bfe_u32 v{VW}, v2, 1, 2
    v_lshrrev_b32 v7, 4, v2
    v_xor_b32 v{VW}, v{VW}, v7
    v_lshlrev_b32 v{VW}, 5, v{VW}
    v_and_b32 v7, 1, v2
    v_lshl_add_u32 v{VW}, v7, 4, v{VW}
    v_lshl_add_u32 v{VW}, v3, 10, v{VW}
    v_add_u32 v{VW+1}, 7168, v{VW}
    v_lshlrev_b32 v{VL}, 4, v2
    s_mul_i32 s63, s62, {14*32768}
    s_lshl_b32 s64, s61, 14
    s_add_u32 s63, s63, s64
    s_lshl_b32 s64, s59, 7
    s_add_u32 s63, s63, s64
    s_lshl_b32 s64, s60, 11
    s_lshl_b32 s65, s58, 2
    s_lshl_b32 s66, s61, 1
    s_add_u32 s65, s65, s66
    s_lshr_b32 s66, s62, 1
    s_add_u32 s65, s65, s66
    s_xor_b32 s66, s65, 1
    s_mul_i32 s67, s62, 14
    s_mul_i32 s68, s65, 56
    s_mul_i32 s69, s66, 56
    s_add_u32 s68, s68, s67
    s_add_u32 s69, s69, s67
    s_lshl_b32 s68, s68, 10
    s_lshl_b32 s69, s69, 10""")
    LD = cfg.get('ld', '')
    def ldw(j):
        return [f"s_add_u32 m0, s64, {(j%10)*16384}\ns_nop 0\nbuffer_load_dwordx4 v{VW}, {s(SW,4)}, s63 offen lds",
                f"buffer_load_dwordx4 v{VW+1}, {s(SW,4)}, s63 offen offset:1024 lds\ns_add_u32 s63, s63, 32768"]
    def ldg(j):
        r = [f"buffer_load_dwordx4 {v(GF+8*j+4*b,4)}, v{VL}, {s(SG,4)}, s{68+b} offen offset:{1024*(j&3)} {LD}" for b in range(2)]
        if j & 3 == 3: r[1] += "\ns_add_u32 s68, s68, 4096\ns_add_u32 s69, s69, 4096"
        return r
    def chunk(c): return ldw(2*c) + ldw(2*c+1) + ldg(2*c) + ldg(2*c+1)
    for c in range(5):
        for x in chunk(c): a(x)
    srd(a, SH, WS, 2 << 20, add=WS_HT); srd(a, SO, OUT, 2 << 20)
    a(f"""v_lshrrev_b32 v3, 2, v2          ; row = 4g+r
    v_bfe_u32 v7, v2, 3, 2
    s_and_b32 s70, s62, 1            ; dp
    s_lshl_b32 s71, s70, 1
    v_xor_b32 v7, s71, v7
    v_lshlrev_b32 v7, 5, v7
    v_lshl_add_u32 v7, v3, 7, v7
    v_and_b32 v3, 3, v2
    v_lshl_add_u32 v7, v3, 3, v7
    s_lshl_b32 s71, s62, 12
    v_add_u32 v{AA}, s71, v7""")
    for x in range(1, 4): a(f"v_xor_b32 v{AA+x}, {32*x}, v{AA}")
    for x in range(8): a(f"v_add_u32 v{AA+4+x}, 0x10000, v{AA+x}")
    a(f"""v_lshrrev_b32 v3, 1, v2
    s_and_b32 s71, s65, 7
    v_xor_b32 v7, s71, v3
    v_and_b32 v7, 7, v7
    v_lshlrev_b32 v7, 5, v7
    v_lshl_add_u32 v7, v3, 8, v7
    v_and_b32 v3, 1, v2
    v_lshl_add_u32 v20, v3, 4, v7
    s_lshr_b32 s71, s65, 3
    s_lshl_b32 s71, s71, 17
    s_lshl_b32 s72, s59, 1
    s_add_u32 s72, s72, s70          ; d/32
    s_lshl_b32 s73, s72, 13
    s_add_u32 s71, s71, s73
    s_lshl_b32 s73, s60, 10
    s_add_u32 s73, s73, {4*16384}
    v_lshl_add_u32 v21, v2, 3, s73
    s_mul_i32 s74, s60, 6144
    s_add_u32 s74, s74, {5*16384}
    v_add_u32 v22, s74, v{VL}
    v_and_b32 v3, 15, v2
    v_lshlrev_b32 v3, 10, v3
    v_bfe_u32 v7, v2, 4, 1
    v_lshl_add_u32 v3, v7, 5, v3
    v_lshrrev_b32 v7, 5, v2
    v_lshl_add_u32 v23, v7, 4, v3
    s_lshl_b32 s75, s65, 14
    s_lshl_b32 s72, s72, 6
    s_add_u32 s75, s75, s72""")
    def reads(j):
        sl = j % 10; f = FA + 16 * (j & 1); ad = AA + 4 * (sl >> 2); o = (sl & 3) * 16384; r = []
        for x in range(4):
            r += [f"ds_read_b64_tr_b16 {v(f+4*x,2)}, v{ad+x} offset:{o}", f"ds_read_b64_tr_b16 {v(f+4*x+2,2)}, v{ad+x} offset:{o+2048}"]
        return r
    def mfmas(j):
        f = FA + 16 * (j & 1)
        return [f"v_mfma_f32_16x16x32_bf16 {v(AC+16*b+4*x,4)}, {v(f+4*x,4)}, {v(GF+8*j+4*b,4)}, {v(AC+16*b+4*x,4) if j else 0}"
                for x in range(4) for b in range(2)]
    issued = 40
    a(f"s_waitcnt vmcnt({issued-4})\ns_barrier")
    stamp(a, cfg, 1)
    for x in reads(0): a(x)
    for j in range(14):
        c = j >> 1
        if j & 1 == 0:
            a(f"s_waitcnt vmcnt({issued-(8*c+6)}) lgkmcnt(0)")
            weave(a, mfmas(j), reads(j + 1), per=2)
        elif j < 13:
            a(f"s_waitcnt vmcnt({issued-(8*c+12)}) lgkmcnt(0)\ns_barrier")
            fill = reads(j + 1)
            ex = chunk(c + 5) if c < 2 else [f"s_mov_b32 m0, s73\ns_nop 0\nbuffer_load_dwordx4 v20, {s(SH,4)}, s71 offen lds {LD}"] if c == 2 else []
            issued += len(ex)
            weave(a, mfmas(j), fill + ex, per=2)
        else:
            a(f"s_waitcnt vmcnt(0) lgkmcnt(0)")
            m = mfmas(j)
            m = [m[i] for i in (5, 7, 1, 3, 4, 6, 0, 2)]
            fill = [f"ds_read_b64_tr_b16 v[{FA}:{FA+1}], v21", f"ds_read_b64_tr_b16 v[{FA+2}:{FA+3}], v21 offset:512"]
            for i in (1, 2, 3):
                fill.append(f"s_xor_b32 s76, s60, {2*i}\ns_mul_i32 s76, s76, 6144\ns_add_u32 s76, s76, {5*16384 + 2048*(i-1)}\nv_add_u32 v{AA+i}, s76, v{VL}")
            weave(a, m, fill)
    stamp(a, cfg, 2)
    a("s_nop 1")
    for i in (3, 2, 1):
        if i == 1: a("s_nop 3")
        a(f"ds_write_b128 v{AA+i}, {v(AC+8*i,4)}\nds_write_b128 v{AA+i}, {v(AC+8*i+4,4)} offset:1024")
    a("s_mov_b32 s70, 0xffff0000\ns_waitcnt lgkmcnt(6)")
    for i in range(4):
        a(f"v_lshlrev_b32 v{FA+8+2*i}, 16, v{FA+i}\nv_and_b32 v{FA+9+2*i}, s70, v{FA+i}")
    a("s_waitcnt lgkmcnt(0)\ns_barrier")
    for i in range(6): a(f"ds_read_b128 {v(GF+4*i,4)}, v22 offset:{1024*i}")
    for i in range(3):
        a(f"s_waitcnt lgkmcnt({4-2*i})")
        for p in range(4): a(f"v_pk_add_f32 {v(AC+2*p,2)}, {v(AC+2*p,2)}, {v(GF+8*i+2*p,2)}")
    for p in range(4): a(f"v_cvt_pk_bf16_f32 v{FA+p}, v{AC+2*p}, v{AC+2*p+1}")
    for p in range(4):
        a(f"v_lshlrev_b32 v{AC+2*p}, 16, v{FA+p}\nv_and_b32 v{AC+2*p+1}, s70, v{FA+p}")
    for p in range(4): a(f"v_pk_add_f32 {v(AC+2*p,2)}, {v(AC+2*p,2)}, {v(FA+8+2*p,2)}")
    for p in range(4): a(f"v_cvt_pk_bf16_f32 v{FA+p}, v{AC+2*p}, v{AC+2*p+1}")
    a(f"""s_nop 1
    v_permlane16_swap_b32 v{FA}, v{FA+2}
    v_permlane16_swap_b32 v{FA+1}, v{FA+3}
    buffer_store_dwordx4 {v(FA,4)}, v23, {s(SO,4)}, s75 offen {cfg.get('ost','')}""")
```

```python
import sys, os, importlib
sys.path.insert(0, os.path.dirname(os.path.abspath(__file__)))
from asm import *
import p01
def build(cfg):
    ks = [('p0_kernel', 256, 256, 0, p01.p0_body, 112),
          ('p1_kernel', 256, 256, p01.P1_LDS, p01.p1_body, (272, 256))]
    if cfg.get('upto', 4) > 2:
        import p23
        ks += [('p2_kernel', 224, 512, p23.P2_LDS, p23.p2_body, p23.P2_VGPR)]
        if cfg.get('upto', 4) > 3:
            ks += [('p3_kernel', 256, 512, p23.P3_LDS, p23.p3_body, p23.P3_VGPR)]
    head = "; H3 SSM-conv block + GeGLU FFN, four launches (prep / long conv / gate+up / down)\n"
    for n, g, b, l, f, vg in ks:
        head += f"; @launch kernel={n} grid=({g},1,1) block=({b},1,1) lds={l}\n"
    a = Asm()
    a('.amdgcn_target "amdgcn-amd-amdhsa--gfx950"\n.text')
    for i, (n, g, b, l, f, vg) in enumerate(ks):
        kernel_head(a, n)
        end = f"L_end_{n}"
        a(f"s_cmp_ge_u32 s2, {g}\ns_cbranch_scc1 {end}")
        p01.load_args(a)
        if cfg.get('ts'): a("v_mov_b32 v255, 0")
        p01.stamp(a, cfg, 0)
        a("s_waitcnt lgkmcnt(0)")
        f(a, cfg)
        if cfg.get('ts'):
            p01.stamp(a, cfg, 14)
            a("s_waitcnt vmcnt(0)")
            p01.stamp(a, cfg, 15)
            p01.stamp_flush(a, cfg, i)
        a(f"{end}:\ns_endpgm")
    a("L_code_end:")
    t = head + a.text() + '.section .rodata,"a"\n'
    for n, g, b, l, f, vg in ks:
        if isinstance(vg, tuple): tot, acc = vg
        else:
            if cfg.get('ts'): vg = 256
            tot, acc = vg, (vg + 3) // 4 * 4
        t += kernel_desc(n, tot, acc)
    return t
if __name__ == '__main__':
    cfg = {}
    for x in sys.argv[2:]:
        k, val = x.split('=')
        cfg[k] = int(val) if val.lstrip('-').isdigit() else val
    open(sys.argv[1], 'w').write(build(cfg))
```

```python
from asm import *
from p01 import *
NS = 6
P2_G, P2_U, P2_H = 0, NS * 8192, 2 * NS * 8192
P2_ST = 3 * NS * 8192
PB = P2_H
KW = 8448
L_U = PB + 4 * KW
L_CSR = L_U + 9216
L_CNT = P2_ST + 1024
WS_SY = (4 << 20) + (128 << 10)
SY = 84
LD = "sc1"

def arrive(a, cfg, word, shard_sgpr):
    S, R = cfg['S'], cfg['R']
    a(f"""v_and_b32 v250, 63, v0
    v_mov_b32 v251, 1
    v_mul_u32_u24 v250, {128*S}, v250
    s_lshl_b32 s90, {shard_sgpr}, 7
    buffer_atomic_add v251, v250, {s(SY,4)}, s90 offen offset:{4*word} sc1""")

def poll(a, cfg, word, expect, one=None):
    S, R = cfg['S'], cfg['R']
    L = a.label('poll'); E = a.label('pollx')
    a(f"s_and_b32 s90, s2, {R-1}\ns_mul_i32 s90, s90, {128*S}")
    if one:
        a(f"s_lshl_b32 s91, {one}, 7\ns_add_u32 s90, s90, s91\nv_mov_b32 v250, 0")
    else:
        a(f"v_and_b32 v250, {S-1}, v0\nv_lshlrev_b32 v250, 7, v250")
    a(f"""{L}:
    buffer_load_dword v251, v250, {s(SY,4)}, s90 offen offset:{4*word} sc1
    s_sub_u32 s89, s89, 1
    s_cbranch_scc1 {E}
    s_waitcnt vmcnt(0)
    v_cmp_ne_u32 vcc, {expect}, v251
    s_cbranch_vccnz {L}
    {E}:
    s_max_i32 s89, s89, 0""")

def last_wave(a, slot, skip):
    a(f"""v_mov_b32 v250, {L_CNT + 4*slot}
    v_mov_b32 v251, 1
    s_mov_b64 exec, 1
    ds_add_rtn_u32 v251, v250, v251
    s_mov_b64 exec, -1
    s_waitcnt lgkmcnt(0)
    v_readfirstlane_b32 s90, v251
    s_cmp_lg_u32 s90, 3
    s_cbranch_scc1 {skip}""")

def conv_waves(a, cfg):
    SKR = 32
    A0, B0, C0 = 24, 152, 216
    S, R = cfg['S'], cfg['R']
    L0 = a.label('noinit')
    a(f"""s_lshr_b32 s49, s88, 1           ; ch
    s_and_b32 s50, s88, 1            ; half
    s_lshl_b32 s51, s2, 1
    s_add_u32 s51, s51, s49          ; d
    s_lshl_b32 s52, s51, 12
    v_and_b32 v2, 63, v0
    s_or_b32 s53, s2, s88
    s_cbranch_scc1 {L0}
    v_mov_b32 v4, 0
    v_mov_b32 v5, 0
    v_mov_b32 v6, 0
    v_mov_b32 v7, 0
    v_lshlrev_b32 v3, 7, v2""")
    for i in range((S * R + 63) // 64):
        a(f"s_movk_i32 s53, {8192*i}\nbuffer_store_dwordx4 v[4:7], v3, {s(SY,4)}, s53 offen sc1")
    srd(a, 36, DBG, 4)
    a(f"""v_mov_b32 v8, 1
    s_waitcnt vmcnt(0)
    buffer_store_dword v8, v3, s[36:39], 0 offen sc1
    {L0}:""")
    srd(a, SKR, SSK, 4096, add='s52')
    a(f"""s_mul_i32 s54, s88, {KW}
    s_add_u32 s54, s54, {PB}
    v_lshlrev_b32 v3, 2, v2
    v_subrev_u32 v3, 32, v3
    v_lshlrev_b32 v4, 4, v2
    v_add_u32 v5, 4, v4
    v_add_u32 v6, 4, v3""")
    for c in range(2):
        a(f"s_add_u32 m0, s54, {32 + c*P1_KC1}\ns_nop 0")
        for j in range(4):
            a(f"buffer_load_dwordx4 v{4+c}, {s(SKR,4)}, 0 offen offset:{1024*j} lds")
        a(f"s_add_u32 m0, s54, {c*P1_KC1}\ns_nop 0\nbuffer_load_dword v{3+3*c}, {s(SKR,4)}, 0 offen lds")
    a(f"""s_lshr_b32 s64, s2, 3
    s_cmp_ge_u32 s64, 14
    s_cselect_b32 s68, s{WU}, s{WG}
    s_cselect_b32 s69, s{WU+1}, s{WG+1}
    s_cselect_b32 s65, 14, 0
    s_cmp_lt_u32 s64, 28
    s_cselect_b32 s70, {512*3584}, 0
    s_mov_b32 s71, 0x00020000
    s_sub_u32 s64, s64, s65
    s_lshl_b32 s64, s64, 2
    s_and_b32 s65, s2, 3
    s_add_u32 s64, s64, s65
    s_bfe_u32 s65, s2, 0x10002
    s_mul_i32 s65, s65, 56
    s_add_u32 s64, s64, s65
    s_lshl_b32 s64, s64, 5
    s_mul_i32 s65, s88, {128*3584}
    s_add_u32 s64, s64, s65
    v_lshrrev_b32 v7, 1, v2
    v_mul_u32_u24 v7, 3584, v7
    v_and_b32 v8, 1, v2
    v_lshl_add_u32 v7, v8, 4, v7
    v_mov_b32 v9, {L_CNT}
    v_mov_b32 v10, 0
    v_mov_b32 v11, 0
    ds_write_b64 v9, v[10:11]
    s_waitcnt lgkmcnt(0)
    s_barrier""")
    for j in range(4):
        a(f"buffer_load_dwordx4 {v(B0+4*j,4)}, v7, s[68:71], s64 offen\ns_add_u32 s64, s64, {32*3584}")
    a("""v_mov_b32 v7, 0x3f80
    v_lshlrev_b32 v8, 4, v8
    v_lshlrev_b32 v7, v8, v7
    v_bfe_u32 v8, v2, 1, 2""")
    for j in range(4):
        a(f"v_cmp_eq_u32 vcc, {j}, v8\ns_nop 1\nv_cndmask_b32 v{B0+16+j}, 0, v7, vcc")
    a(f"""s_mul_i32 s53, s49, 4608
    s_add_u32 s53, s53, {L_U}
    v_lshl_add_u32 v8, v2, 3, s53
    ds_write_b64 v8, v[10:11]
    v_and_b32 v9, 15, v2             ; m / n
    v_lshrrev_b32 v10, 4, v2         ; g
    v_add_u32 v11, 1, v9
    v_and_b32 v12, 1, v11
    v_lshlrev_b32 v12, 1, v12
    v_lshrrev_b32 v11, 1, v11
    v_and_b32 v13, 1, v11
    v_mul_u32_u24 v13, {P1_KC1}, v13
    v_and_b32 v11, 14, v11
    v_lshl_add_u32 v11, v10, 4, v11
    v_lshl_add_u32 v13, v11, 2, v13
    s_lshl_b32 s62, s50, 8
    s_add_u32 s62, s62, s54
    v_add_u32 v13, s62, v13
    v_lshlrev_b32 v14, 1, v9
    v_lshlrev_b32 v15, 2, v10
    v_sub_u32 v14, v14, v15
    s_lshl_b32 s63, s50, 4
    s_sub_u32 s63, 33, s63
    v_add_u32 v14, s63, v14""")
    for rho in range(4):
        a(f"""v_subrev_u32 v15, {rho}, v14
        v_bfe_u32 v20, v15, 4, 1
        v_xor_b32 v15, v15, v20
        v_lshl_add_u32 v{16+rho}, v15, 4, s53""")
    a(f"""v_lshrrev_b32 v14, 5, v2
    v_lshlrev_b32 v14, 7, v14
    v_xor_b32 v14, v14, v4
    s_lshl_b32 s63, s88, 13
    s_add_u32 s63, s63, {PB}
    v_add_u32 v22, s63, v14
    s_waitcnt vmcnt(4)""")
    stamp(a, cfg, 1)
    def align(p):
        for i in range(16):
            hi = A0+16*p+i+1 if i < 15 else B0+32+p
            a(f"v_alignbyte_b32 v{A0+16*p+i}, v{hi}, v{A0+16*p+i}, v12")
    for p in range(8):
        for i in range(8):
            a(f"ds_read_b64 {v(A0+16*p+2*i,2)}, v13 offset:{512*p+8*i}")
        a(f"ds_read_b32 v{B0+32+p}, v13 offset:{512*p+64}")
        if p >= 1:
            a("s_waitcnt lgkmcnt(9)"); align(p - 1)
    a("s_waitcnt vmcnt(0) lgkmcnt(0)")
    for j in range(4):
        a(f"v_mfma_f32_16x16x32_bf16 {v(C0,4)}, {v(B0+16,4)}, {v(B0+4*j,4)}, {v(C0,4) if j else 0}")
    align(7)
    for ctl in ("quad_perm:[2,3,0,1]", "row_ror:4", "row_ror:8"):
        for j in range(4):
            a(f"v_add_f32_dpp v{C0+j}, v{C0+j}, v{C0+j} {ctl} row_mask:0xf bank_mask:0xf")
    a(f"""v_and_b32 v14, 1, v2
    v_and_b32 v15, 1, v10
    v_lshl_add_u32 v14, v14, 1, v15
    s_lshl_b32 s63, s88, 6
    s_add_u32 s63, s63, {L_CSR}
    v_lshl_add_u32 v14, v14, 4, s63
    ds_write_b128 v14, {v(C0,4)}
    s_waitcnt lgkmcnt(0)""")
    stamp(a, cfg, 2)
    a("s_barrier")
    stamp(a, cfg, 3)
    def rdB(rho, q):
        a(f"ds_read_b128 {v(B0+32*(rho&1)+4*q,4)}, v{16+rho} offset:{512*q}")
    for q in range(8): rdB(0, q)
    for rho in range(4):
        cnt = 0
        for q in range(8):
            nxt = min(cnt, 8) if rho < 3 else 0
            if rho == 0 or q == 0:
                a(f"s_waitcnt lgkmcnt({(7-q)+nxt if rho == 0 else 0})")
            for p in range(8 - q):
                c = v(C0+4*(p+q),4)
                a(f"v_mfma_f32_16x16x32_bf16 {c}, {v(A0+16*p+4*rho,4)}, {v(B0+32*(rho&1)+4*q,4)}, {c if rho or q else 0}")
                if rho < 3 and q >= 1 and cnt < 8 and p % 2 == 0:
                    rdB(rho + 1, cnt); cnt += 1
                if rho == 3 and p == 0 and q in (2, 3, 4, 5):
                    a(f"ds_write_b128 v22, {v(C0+4*(q-2),4)} offset:{1024*(q-2)}")
    a(f"ds_write_b128 v22, {v(C0+16,4)} offset:4096\ns_nop 1\nds_write_b128 v22, {v(C0+20,4)} offset:5120\ns_nop 1")
    a(f"ds_write_b128 v22, {v(C0+24,4)} offset:6144\ns_nop 1\nds_write_b128 v22, {v(C0+28,4)} offset:7168\ns_waitcnt lgkmcnt(0)")
    stamp(a, cfg, 4)
    a("s_barrier")

def help_waves(a, cfg, wpre):
    SW, SD, SH = 48, 32, 36
    S, R = cfg['S'], cfg['R']
    a("v_and_b32 v0, 0xff, v0")
    c = dict(cfg); c['p0_extra'] = lambda a: (a("s_barrier"), 0)[1]
    p0_body(a, c)
    L = a.label('rdy'); E = a.label('rdyx'); K1 = a.label('notlast'); K2 = a.label('nopoll'); K3 = a.label('notlast')
    srd(a, 40, DBG, 4)
    stamp(a, cfg, 1)
    a(f"""{L}:
    buffer_load_dword v8, off, s[40:43], 0 sc1
    s_sub_u32 s89, s89, 1
    s_cbranch_scc1 {E}
    s_waitcnt vmcnt(0)
    v_cmp_eq_u32 vcc, 0, v8
    s_cbranch_vccnz {L}
    {E}:
    s_max_i32 s89, s89, 0""")
    stamp(a, cfg, 2)
    last_wave(a, 0, K1)
    a(f"s_lshr_b32 s91, s2, {8 - (S.bit_length()-1)}")
    arrive(a, cfg, 0, 's91')
    a(f"""{K1}:
    v_and_b32 v2, 63, v0
    v_lshlrev_b32 v4, 4, v2
    s_bfe_u32 s53, s88, 0x10001      ; ch
    s_and_b32 s54, s88, 1            ; half
    s_lshl_b32 s55, s2, 1
    s_add_u32 s55, s55, s53          ; d
    s_cmp_lg_u32 s88, 4
    s_cbranch_scc1 {K2}""")
    poll(a, cfg, 0, 256 // S)
    stamp(a, cfg, 3)
    a("s_lshl_b32 s56, s2, 13")
    for ch in range(2):
        a(f"s_mov_b32 m0, {L_U + 4608*ch + 512}\ns_nop 0")
        for j in range(4):
            a(f"buffer_load_dwordx4 v4, {s(SW,4)}, s56 offen offset:{1024*j} {LD} lds")
        if ch == 0: a("s_add_u32 s56, s56, 4096")
    a(f"s_waitcnt vmcnt(0)\n{K2}:")
    srd(a, SD, SSD, 1024); srd(a, SH, WS, 2 << 20, add=WS_HT)
    XR, SR, UR, T, XN, YR = 24, 32, 48, 56, 72, 88
    a(f"""s_lshl_b32 s56, s55, 12
    s_lshl_b32 s57, s54, 11
    s_add_u32 s56, s56, s57
    s_add_u32 s56, s56, {WS_XT}
    s_lshl_b32 s58, s57, 1
    s_add_u32 s58, s58, {WS_ST}
    s_lshl_b32 s59, s55, 1
    v_lshlrev_b32 v5, 5, v2
    v_bfe_u32 v6, v2, 4, 1
    v_xor_b32 v6, v6, v2
    s_mul_i32 s60, s53, 4608
    s_add_u32 s60, s60, s57
    s_add_u32 s60, s60, {L_U + 512}
    v_lshl_add_u32 v6, v6, 4, s60    ; u address
    v_and_b32 v7, 15, v2
    v_lshlrev_b32 v7, 2, v7
    v_add_u32 v8, {L_CSR}, v7
    s_barrier""")
    stamp(a, cfg, 4)
    a(f"""buffer_load_dwordx4 {v(XR,4)}, v4, {s(SW,4)}, s56 offen {LD}
    buffer_load_dwordx4 {v(SR,4)}, v5, {s(SW,4)}, s58 offen {LD}
    buffer_load_dwordx4 {v(SR+4,4)}, v5, {s(SW,4)}, s58 offen offset:16 {LD}
    buffer_load_dwordx4 {v(XR+4,4)}, v4, {s(SW,4)}, s56 offen offset:1024 {LD}
    buffer_load_dwordx4 {v(SR+8,4)}, v5, {s(SW,4)}, s58 offen offset:2048 {LD}
    buffer_load_dwordx4 {v(SR+12,4)}, v5, {s(SW,4)}, s58 offen offset:2064 {LD}
    buffer_load_ushort v23, off, {s(SD,4)}, s59
    ds_read_b128 {v(UR,4)}, v6
    ds_read_b128 {v(UR+4,4)}, v6 offset:1024""")
    for t in range(4): a(f"ds_read_b32 v{16+t}, v8 offset:{64*t}")
    n = wpre(a)
    a(f"""s_lshr_b32 s64, s2, 3
    s_cmp_ge_u32 s64, 14
    s_cselect_b32 s65, 56, 0
    s_cmp_lt_u32 s64, 28
    s_cselect_b32 s74, {3584*4}, 0
    s_mov_b32 s75, 0x00020000
    s_add_u32 s72, s{WS}, {WS_CS}
    s_addc_u32 s73, s{WS+1}, 0
    s_lshl_b32 s64, s64, 2
    s_add_u32 s64, s64, s65
    s_and_b32 s65, s2, 3
    s_add_u32 s64, s64, s65
    s_bfe_u32 s65, s2, 0x10002
    s_mul_i32 s65, s65, 56
    s_add_u32 s64, s64, s65
    s_lshl_b32 s76, s64, 6
    v_and_b32 v15, 0xf0, v0
    v_lshl_add_u32 v7, v15, 12, v7
    v_and_b32 v9, 1, v2
    v_bfe_u32 v10, v2, 1, 4          ; n
    v_lshlrev_b32 v10, 4, v10
    v_mul_u32_u24 v11, 640, v9
    v_xor_b32 v10, v10, v11
    v_lshrrev_b32 v11, 5, v2
    v_lshl_add_u32 v10, v11, 10, v10
    s_lshl_b32 s60, s53, 14
    s_lshl_b32 s61, s54, 12
    s_add_u32 s60, s60, s61
    s_add_u32 s60, s60, {PB}
    v_add_u32 v10, s60, v10          ; y address
    v_bfe_u32 v11, v2, 1, 3
    s_and_b32 s60, s55, 7
    v_xor_b32 v11, s60, v11
    v_lshlrev_b32 v11, 5, v11
    v_lshl_add_u32 v11, v9, 4, v11
    v_lshrrev_b32 v9, 4, v2
    v_lshl_add_u32 v11, v9, 17, v11
    s_lshl_b32 s62, s54, 20
    s_lshl_b32 s63, s55, 8
    s_add_u32 s62, s62, s63
    s_add_u32 s63, s62, 0x80000
    s_mov_b32 s59, 0xffff0000
    s_waitcnt lgkmcnt(0)
    v_add_f32 v16, v16, v17
    v_add_f32 v18, v18, v19
    v_add_f32 v16, v16, v18
    buffer_store_dword v16, v7, s[72:75], s76 offen {ST}
    s_waitcnt vmcnt({n+1})
    v_lshlrev_b32 v23, 16, v23""")
    for e in range(16):
        j = e & 7; xs = XR + (e >> 1); us = UR + 4 * (e >> 3) + 3 - (j >> 1)
        a(f"v_lshlrev_b32 v{T+e}, 16, v{xs}" if j % 2 == 0 else f"v_and_b32 v{T+e}, s59, v{xs}")
        a(f"""v_and_b32 v20, s59, v{SR+e}
        v_rcp_f32 v20, v20
        v_lshlrev_b32 v21, 16, v{SR+e}
        v_sub_f32 v21, v{T+e}, v21
        v_mul_f32 v{XN+e}, v21, v20""")
        a(f"v_and_b32 v21, s59, v{us}" if j % 2 == 0 else f"v_lshlrev_b32 v21, 16, v{us}")
        a(f"v_mul_f32 v21, v21, v23\nv_fmac_f32 v{T+e}, v{XN+e}, v21")
    stamp(a, cfg, 5)
    a("s_barrier")
    for sp in range(2):
        for w in range(2):
            for gg in range(2):
                a(f"ds_read_b128 {v(YR+16*sp+8*w+4*gg,4)}, v10 offset:{8192*w+2048*sp+256*gg}")
    for sp in range(2):
        a(f"s_waitcnt lgkmcnt({4-4*sp})")
        y = YR + 16 * sp
        for p in range(4): a(f"v_pk_add_f32 {v(y+2*p,2)}, {v(y+2*p,2)}, {v(y+8+2*p,2)}")
        for p in range(4): a(f"v_pk_fma_f32 {v(y+2*p,2)}, {v(y+2*p,2)}, {v(XN+8*sp+2*p,2)}, {v(T+8*sp+2*p,2)}")
        for p in range(4): a(f"v_cvt_pk_bf16_f32 v{XR+4*sp+p}, v{y+2*p}, v{y+2*p+1}")
        a(f"buffer_store_dwordx4 {v(XR+4*sp,4)}, v11, {s(SH,4)}, s{62+sp} offen {ST}")
    stamp(a, cfg, 6)
    a("s_waitcnt vmcnt(0)")
    last_wave(a, 1, K3)
    a(f"s_lshr_b32 s91, s2, {8 - (S.bit_length()-1)}")
    arrive(a, cfg, 1, 's91')
    a(f"{K3}:\nv_or_b32 v0, 0x100, v0")
```

```python
from asm import *
from p01 import *
from mk1 import *
P2_LDS = P2_ST + 1024
P2_VGPR = 200
import struct
def fl(x): return hex(struct.unpack('<I', struct.pack('<f', x))[0])

def weave(a, mf, fill, start=0, per=1):
    fill = list(fill)
    for i, m in enumerate(mf):
        a(m)
        if i >= start:
            for _ in range(per):
                if fill: a(fill.pop(0))
    for f in fill: a(f)

def p2_ids(a):
    a(f"""s_and_b32 s56, s2, 7
    s_lshr_b32 s57, s2, 3
    s_and_b32 s58, s56, 3
    s_lshl_b32 s58, s58, 2
    s_and_b32 s59, s57, 3
    s_add_u32 s58, s58, s59          ; tb
    s_lshr_b32 s56, s56, 2
    s_mul_i32 s56, s56, 7
    s_lshr_b32 s59, s57, 2
    s_add_u32 s59, s59, s56          ; ft
    v_lshrrev_b32 v3, 4, v0
    v_bfe_u32 v13, v0, 1, 3
    v_xor_b32 v13, v13, v3
    v_and_b32 v13, 7, v13
    v_lshlrev_b32 v13, 5, v13
    v_and_b32 v15, 1, v0
    v_lshl_add_u32 v13, v15, 4, v13
    v_mul_u32_u24 v3, 3584, v3
    s_lshl_b32 s62, s59, 8
    v_add3_u32 v13, v13, v3, s62""")

def p2_wpre(a):
    p2_ids(a)
    srd(a, 64, WG, 512 * 3584); srd(a, 68, WU, 512 * 3584)
    a(f"""s_cmp_lt_u32 s57, 28
    s_cselect_b32 s66, s66, 0
    s_cselect_b32 s70, s70, 0
    s_lshl_b32 s63, s88, 10
    s_mov_b32 s62, 0""")
    for i in range(2 * NS):
        a(f"""s_add_u32 m0, s63, {P2_G + 4096*(i-1)}
        s_nop 0
        buffer_load_dwordx4 v13, s[64:67], s62 offen lds
        s_add_u32 m0, s63, {P2_U + 4096*(i-1)}
        s_nop 0
        buffer_load_dwordx4 v13, s[68:71], s62 offen lds
        s_add_u32 s62, s62, {16*3584}""")
    return 4 * NS

def p2_body(a, cfg, spare):
    SH, SG, SU, SO, SC, SD = 32, 36, 40, 44, 48, 52
    AB, AG, AU = 4, 8, 10
    VH, VW, VL = 12, 13, 14
    S0, T0 = 16, 20
    CS, FR, AC = 24, 40, 104
    EP = 168
    p2_ids(a)
    K = a.label('nopoll')
    a(f"""v_and_b32 v2, 63, v0
    s_mov_b32 s60, s88
    s_lshl_b32 s61, s58, 17
    s_add_u32 s61, s61, {WS_HT}""")
    srd(a, SH, WS, 131072, add='s61'); srd(a, SG, WG, 512 * 3584); srd(a, SU, WU, 512 * 3584)
    a(f"""v_lshlrev_b32 v{VH}, 4, v0        ; 16l + 1024w
    s_lshl_b32 s63, s60, 10
    s_mov_b32 s64, 0
    s_mov_b32 s65, {NS*32*3584}""")
    def dma(st):
        sl = st % NS
        return [f"s_add_u32 m0, s63, {P2_G + sl*8192}\ns_nop 0\nbuffer_load_dwordx4 v{VW}, {s(SG,4)}, s65 offen lds",
                f"s_add_u32 m0, s63, {P2_U + sl*8192}\ns_nop 0\nbuffer_load_dwordx4 v{VW}, {s(SU,4)}, s65 offen lds",
                f"s_add_u32 m0, s63, {P2_H + sl*8192}\ns_add_u32 s65, s65, {32*3584}\nbuffer_load_dwordx4 v{VH}, {s(SH,4)}, s64 offen {LD} lds\ns_add_u32 s64, s64, 8192"]
    srd(a, SO, WS, 7 << 20, add=WS_G); srd(a, SC, WS, 3584 * 4, add=WS_CS); srd(a, SD, WD, 1792 * 1024)
    a(f"""s_and_b32 s66, s60, 1            ; th
    s_lshr_b32 s67, s60, 1           ; fq
    v_lshrrev_b32 v3, 2, v2          ; row = 4g+r
    v_and_b32 v15, 7, v3
    v_lshlrev_b32 v15, 5, v15
    v_lshl_add_u32 v15, v3, 8, v15
    v_and_b32 v3, 3, v2
    v_lshl_add_u32 v15, v3, 3, v15   ; base
    s_lshl_b32 s68, s66, 2
    s_add_u32 s68, s68, s67          ; 4th+fq
    s_lshl_b32 s69, s68, 5
    v_xor_b32 v{AB}, s69, v15
    v_add_u32 v{AB}, {P2_H}, v{AB}
    v_xor_b32 v{AB+1}, 32, v{AB}
    v_xor_b32 v{AB+2}, 64, v{AB}
    v_xor_b32 v{AB+3}, 0x60, v{AB}
    s_lshl_b32 s69, s67, 6
    v_xor_b32 v15, s69, v15
    v_add_u32 v{AG}, {P2_G}, v15
    v_xor_b32 v{AG+1}, 32, v{AG}
    v_add_u32 v{AU}, {P2_U}, v15
    v_xor_b32 v{AU+1}, 32, v{AU}
    v_lshlrev_b32 v{VL}, 4, v2
    s_mov_b32 s70, 0xffff0000
    s_lshl_b32 s71, s59, 9
    s_lshl_b32 s72, s67, 7
    s_add_u32 s71, s71, s72
    s_add_u32 s72, s71, {1792*4}
    s_lshl_b32 s73, s57, 16
    s_lshl_b32 s74, s58, 3
    s_lshl_b32 s75, s59, 2
    s_add_u32 s75, s75, s67          ; ks""")
    for b in range(4):
        a(f"s_xor_b32 s76, s68, {b}\ns_add_u32 s76, s76, s74\ns_mul_i32 s76, s76, 56\ns_add_u32 s76, s76, s75\ns_lshl_b32 s{80+b}, s76, 10")
    for i in range(4): a(f"v_mov_b32 v{S0+i}, 0")
    def reads(st):
        o = (st % NS) * 8192; f = FR + 32 * (st & 1); r = []
        order = [(f, AG), (f+16, AB), (f+4, AG+1), (f+20, AB+1), (f+8, AU), (f+24, AB+2), (f+12, AU+1), (f+28, AB+3)]
        for d, ad in order:
            r += [f"ds_read_b64_tr_b16 {v(d,2)}, v{ad} offset:{o}", f"ds_read_b64_tr_b16 {v(d+2,2)}, v{ad} offset:{o+4096}"]
        return r
    def stats(st):
        f = FR + 32 * (st & 1) + 16; r = []
        for i in range(4):
            t = T0 + 2 * (i & 1)
            r += [f"v_lshlrev_b32 v{t}, 16, v{f+i}", f"v_and_b32 v{t+1}, s70, v{f+i}",
                  f"v_add_f32 v{S0}, v{S0}, v{t}", f"v_add_f32 v{S0+1}, v{S0+1}, v{t+1}",
                  f"v_fmac_f32 v{S0+2}, v{t}, v{t}", f"v_fmac_f32 v{S0+3}, v{t+1}, v{t+1}"]
        return r
    def mfmas(st):
        f = FR + 32 * (st & 1)
        return [f"v_mfma_f32_16x16x32_bf16 {v(AC+16*b+4*x,4)}, {v(f+4*x,4)}, {v(f+16+4*b,4)}, {v(AC+16*b+4*x,4) if st else 0}"
                for b in range(4) for x in range(4)]
    a(f"s_cmp_ge_u32 s57, 28\ns_cbranch_scc1 {spare}\ns_cmp_lg_u32 s88, 0\ns_cbranch_scc1 {K}")
    poll(a, cfg, 1, 256 // cfg['S'])
    a(f"{K}:\ns_barrier")
    stamp(a, cfg, 7)
    for st in range(NS):
        a(f"s_add_u32 m0, s63, {P2_H + st*8192}\ns_nop 0\nbuffer_load_dwordx4 v{VH}, {s(SH,4)}, s64 offen {LD} lds\ns_add_u32 s64, s64, 8192")
    nops = lambda lo, hi: sum(1 if x < NS else 3 for x in range(lo, hi + 1))
    a(f"s_waitcnt vmcnt({NS-1})\ns_barrier")
    stamp(a, cfg, 8)
    for x in reads(0): a(x)
    a(f"s_waitcnt vmcnt({NS-2}) lgkmcnt(0)\ns_barrier")
    for x in dma(NS): a(x)
    extra = 0
    BP = cfg.get('p2_bp', 12)
    for st in range(15):
        mf = mfmas(st); rd = reads(st + 1); sv = stats(st)
        for i in range(BP):
            a(mf[i])
            if i < 8: a(rd[2*i]); a(rd[2*i+1])
            for _ in range(1 if i < 8 else 2): a(sv.pop(0))
        if st < 14:
            a(f"s_waitcnt vmcnt({nops(st+3, min(st+NS,15))+extra}) lgkmcnt(0)\ns_barrier")
        else: a("s_waitcnt lgkmcnt(0)")
        fill = []
        if st + 1 + NS <= 15: fill = dma(st + 1 + NS)
        elif st + 1 + NS == 16:
            fill = [f"v_and_b32 v3, 0x30, v2\nv_lshlrev_b32 v15, 7, v0\nbuffer_load_dwordx4 {v(CS,4)}, v3, {s(SC,4)}, s71 offen {LD}",
                    f"buffer_load_dwordx4 {v(CS+4,4)}, v3, {s(SC,4)}, s71 offen offset:64 {LD}",
                    f"buffer_load_dwordx4 {v(CS+8,4)}, v3, {s(SC,4)}, s72 offen {LD}\nbuffer_load_dwordx4 {v(CS+12,4)}, v3, {s(SC,4)}, s72 offen offset:64 {LD}"]
            extra = 4
            if cfg.get('pf_wd', 1):
                fill.append(f"buffer_load_dword v1, v15, {s(SD,4)}, s73 offen"); extra = 5
        for i in range(BP, 16):
            a(mf[i])
            if fill: a(fill.pop(0))
            for _ in range(2):
                if sv: a(sv.pop(0))
        for x in fill + sv: a(x)
    mf = mfmas(15); sv = stats(15)
    b_ = Asm(); bf16_round_stats(b_, S0, S0 + 2, S0 + 1, T0, T0 + 1, 512)
    sv += [f"v_add_f32 v{S0}, v{S0}, v{S0+1}", f"v_add_f32 v{S0+2}, v{S0+2}, v{S0+3}",
           f"v_mov_b32 v{S0+1}, v{S0}", f"v_mov_b32 v{S0+3}, v{S0+2}", "v_and_b32 v3, 15, v2", "s_lshl_b32 s69, s68, 6",
           f"v_permlane16_swap_b32 v{S0}, v{S0+1}", f"v_permlane16_swap_b32 v{S0+2}, v{S0+3}",
           f"v_add_f32 v{S0}, v{S0}, v{S0+1}", f"v_add_f32 v{S0+2}, v{S0+2}, v{S0+3}",
           f"v_mov_b32 v{S0+1}, v{S0}", f"v_mov_b32 v{S0+3}, v{S0+2}", "v_lshl_add_u32 v3, v3, 2, s69", f"v_add_u32 v3, {P2_ST}, v3",
           f"v_permlane32_swap_b32 v{S0}, v{S0+1}", f"v_permlane32_swap_b32 v{S0+2}, v{S0+3}",
           f"v_add_f32 v{S0}, v{S0}, v{S0+1}", f"v_add_f32 v{S0+2}, v{S0+2}, v{S0+3}"]
    sv += [x.strip() for x in b_.lines]
    sv += [f"ds_write_b32 v3, v{S0+1}", "v_xor_b32 v4, 64, v3", "v_xor_b32 v5, 0x80, v3", "v_xor_b32 v6, 0xc0, v3"]
    weave(a, mf[:13], sv, per=5)
    a("s_waitcnt lgkmcnt(0)\ns_barrier")
    weave(a, mf[13:], [f"ds_read_b32 v{T0+b}, v{3+b}" for b in range(1, 4)])
    stamp(a, cfg, 9)
    a(f"v_mov_b32 v{T0}, v{S0+1}\ns_mov_b32 s77, {fl(-2.302208198)}\ns_mov_b32 s78, {fl(-0.1029432397)}\ns_waitcnt vmcnt({extra-4}) lgkmcnt(0)")
    a("s_mov_b32 s79, s58")
    pre = p3_pre(a, cfg)
    K0 = FR
    for b in range(4):
        a(f"""v_and_b32 v{K0+4*b+1}, s70, v{T0+b}
        v_rcp_f32 v{K0+4*b+2}, v{K0+4*b+1}
        v_lshlrev_b32 v{K0+4*b}, 16, v{T0+b}
        v_mul_f32 v{K0+4*b+1}, v{K0+4*b+1}, v{K0+4*b+1}
        v_mul_f32 v{K0+4*b+3}, v{K0+4*b+2}, v{K0+4*b+2}
        v_mul_f32 v{K0+4*b+3}, s78, v{K0+4*b+3}
        v_mul_f32 v{K0+4*b+3}, v{K0+4*b+3}, v{K0+4*b+2}
        v_mul_f32 v{K0+4*b+2}, s77, v{K0+4*b+2}""")
        for x in pre[4*b:4*b+4]: a(x)
    for b in range(4):
        c = AC + 16 * b; km = v(K0 + 4 * b, 2); kk = v(K0 + 4 * b + 2, 2); t = EP + 8 * (b & 1); o = EP + 16 + 4 * b
        P = range(4)
        for p in range(8): a(f"v_pk_fma_f32 {v(c+2*p,2)}, {v(CS+2*p,2)}, {km}, {v(c+2*p,2)} op_sel_hi:[1,0,1] neg_lo:[0,1,0] neg_hi:[0,1,0]")
        for p in P: a(f"v_pk_mul_f32 {v(t+2*p,2)}, {v(c+2*p,2)}, {v(c+2*p,2)}")
        for p in P: a(f"v_pk_fma_f32 {v(t+2*p,2)}, {v(t+2*p,2)}, {kk}, {kk} op_sel:[0,1,0] op_sel_hi:[1,1,0]")
        for p in P: a(f"v_pk_mul_f32 {v(t+2*p,2)}, {v(t+2*p,2)}, {v(c+2*p,2)}")
        for p in P: a(f"v_exp_f32 v{t+2*p}, v{t+2*p}\nv_exp_f32 v{t+2*p+1}, v{t+2*p+1}\nv_pk_mul_f32 {v(c+2*p,2)}, {v(c+2*p,2)}, {v(c+8+2*p,2)}")
        for p in P: a(f"v_pk_fma_f32 {v(t+2*p,2)}, {v(t+2*p,2)}, {km}, {km} op_sel:[0,1,1] op_sel_hi:[1,1,1]")
        for p in range(8): a(f"v_rcp_f32 v{t+p}, v{t+p}")
        for p in P: a(f"v_pk_mul_f32 {v(c+2*p,2)}, {v(c+2*p,2)}, {v(t+2*p,2)}")
        for p in P: a(f"v_cvt_pk_bf16_f32 v{o+p}, v{c+2*p}, v{c+2*p+1}")
        a(f"buffer_store_dwordx4 {v(o,4)}, v{VL}, {s(SO,4)}, s{80+b} offen {ST}")
    stamp(a, cfg, 10)
    K = a.label('noarr')
    a(f"s_waitcnt vmcnt(0)\ns_barrier\ns_cmp_lg_u32 s88, 0\ns_cbranch_scc1 {K}")
    arrive(a, cfg, 2, 's79')
    a(f"{K}:")

P3_LDS = 163840
P3_VGPR = 216
def ldw(j):
    SW, VW = 32, 4
    return [f"s_add_u32 m0, s64, {(j%10)*16384}\ns_nop 0\nbuffer_load_dwordx4 v{VW}, {s(SW,4)}, s63 offen lds",
            f"buffer_load_dwordx4 v{VW+1}, {s(SW,4)}, s63 offen offset:1024 lds\ns_add_u32 s63, s63, 32768"]
def p3_pre(a, cfg):
    SW, SG = 32, 36
    VW, VL = 4, 6
    a(f"""s_and_b32 s56, s2, 7
    s_lshr_b32 s57, s2, 3
    s_and_b32 s58, s56, 3
    s_lshl_b32 s58, s58, 1
    s_lshr_b32 s56, s56, 2
    s_add_u32 s58, s58, s56
    s_lshl_b32 s58, s58, 2
    s_and_b32 s59, s57, 3
    s_add_u32 s58, s58, s59
    s_lshr_b32 s59, s57, 2           ; d tile (64)
    s_and_b32 s61, s60, 1            ; th
    s_lshr_b32 s62, s60, 1           ; kq""")
    srd(a, SW, WD, 1792 * 1024); srd(a, SG, WS, 7 << 20, add=WS_G)
    a(f"""v_lshrrev_b32 v3, 3, v2          ; row
    v_bfe_u32 v{VW}, v2, 1, 2
    v_lshrrev_b32 v7, 4, v2
    v_xor_b32 v{VW}, v{VW}, v7
    v_lshlrev_b32 v{VW}, 5, v{VW}
    v_and_b32 v7, 1, v2
    v_lshl_add_u32 v{VW}, v7, 4, v{VW}
    v_lshl_add_u32 v{VW}, v3, 10, v{VW}
    v_add_u32 v{VW+1}, 7168, v{VW}
    v_lshlrev_b32 v{VL}, 4, v2
    s_mul_i32 s63, s62, {14*32768}
    s_lshl_b32 s64, s61, 14
    s_add_u32 s63, s63, s64
    s_lshl_b32 s64, s59, 7
    s_add_u32 s63, s63, s64
    s_lshl_b32 s64, s60, 11
    s_lshl_b32 s65, s58, 2
    s_lshl_b32 s66, s61, 1
    s_add_u32 s65, s65, s66
    s_lshr_b32 s66, s62, 1
    s_add_u32 s65, s65, s66
    s_xor_b32 s66, s65, 1
    s_mul_i32 s67, s62, 14
    s_mul_i32 s68, s65, 56
    s_mul_i32 s69, s66, 56
    s_add_u32 s68, s68, s67
    s_add_u32 s69, s69, s67
    s_lshl_b32 s68, s68, 10
    s_lshl_b32 s69, s69, 10""")
    return [x for j in range(8) for x in ldw(j)]

def p3_body(a, cfg):
    SW, SG, SH, SO = 32, 36, 40, 44
    VW, VL, AA = 4, 6, 8
    FA, AC, GF = 24, 56, 88
    def ldg(j):
        r = [f"buffer_load_dwordx4 {v(GF+8*j+4*b,4)}, v{VL}, {s(SG,4)}, s{68+b} offen offset:{1024*(j&3)} {LD}" for b in range(2)]
        if j & 3 == 3: r[1] += "\ns_add_u32 s68, s68, 4096\ns_add_u32 s69, s69, 4096"
        return r
    srd(a, SH, WS, 2 << 20, add=WS_HT); srd(a, SO, OUT, 2 << 20)
    a(f"""v_lshrrev_b32 v3, 2, v2          ; row = 4g+r
    v_bfe_u32 v7, v2, 3, 2
    s_and_b32 s70, s62, 1            ; dp
    s_lshl_b32 s71, s70, 1
    v_xor_b32 v7, s71, v7
    v_lshlrev_b32 v7, 5, v7
    v_lshl_add_u32 v7, v3, 7, v7
    v_and_b32 v3, 3, v2
    v_lshl_add_u32 v7, v3, 3, v7
    s_lshl_b32 s71, s62, 12
    v_add_u32 v{AA}, s71, v7""")
    for x in range(1, 4): a(f"v_xor_b32 v{AA+x}, {32*x}, v{AA}")
    for x in range(8): a(f"v_add_u32 v{AA+4+x}, 0x10000, v{AA+x}")
    a(f"""v_lshrrev_b32 v3, 1, v2
    s_and_b32 s71, s65, 7
    v_xor_b32 v7, s71, v3
    v_and_b32 v7, 7, v7
    v_lshlrev_b32 v7, 5, v7
    v_lshl_add_u32 v7, v3, 8, v7
    v_and_b32 v3, 1, v2
    v_lshl_add_u32 v20, v3, 4, v7
    s_lshr_b32 s71, s65, 3
    s_lshl_b32 s71, s71, 17
    s_lshl_b32 s72, s59, 1
    s_add_u32 s72, s72, s70          ; d/32
    s_lshl_b32 s73, s72, 13
    s_add_u32 s71, s71, s73
    s_lshl_b32 s73, s60, 10
    s_add_u32 s73, s73, {4*16384}
    v_lshl_add_u32 v21, v2, 3, s73
    s_mul_i32 s74, s60, 6144
    s_add_u32 s74, s74, {5*16384}
    v_add_u32 v22, s74, v{VL}
    v_and_b32 v3, 15, v2
    v_lshlrev_b32 v3, 10, v3
    v_bfe_u32 v7, v2, 4, 1
    v_lshl_add_u32 v3, v7, 5, v3
    v_lshrrev_b32 v7, 5, v2
    v_lshl_add_u32 v23, v7, 4, v3
    s_lshl_b32 s75, s65, 14
    s_lshl_b32 s72, s72, 6
    s_add_u32 s75, s75, s72""")
    def reads(j):
        sl = j % 10; f = FA + 16 * (j & 1); ad = AA + 4 * (sl >> 2); o = (sl & 3) * 16384; r = []
        for x in range(4):
            r += [f"ds_read_b64_tr_b16 {v(f+4*x,2)}, v{ad+x} offset:{o}", f"ds_read_b64_tr_b16 {v(f+4*x+2,2)}, v{ad+x} offset:{o+2048}"]
        return r
    def mfmas(j):
        f = FA + 16 * (j & 1)
        return [f"v_mfma_f32_16x16x32_bf16 {v(AC+16*b+4*x,4)}, {v(f+4*x,4)}, {v(GF+8*j+4*b,4)}, {v(AC+16*b+4*x,4) if j else 0}"
                for x in range(4) for b in range(2)]
    K = a.label('nopoll')
    a(f"s_cmp_lg_u32 s88, 0\ns_cbranch_scc1 {K}\ns_lshr_b32 s76, s58, 1")
    poll(a, cfg, 2, 14, one='s76')
    a(f"{K}:\ns_waitcnt vmcnt(0)\ns_barrier")
    stamp(a, cfg, 11)
    ops = []
    def issue(name, l):
        ops.extend([name] * len(l)); return l
    def need(*names):
        last = max([i for i, o in enumerate(ops) if o in names] + [-1])
        return len(ops) - 1 - last
    for j in range(14):
        if j == 8:
            for x in issue('w8', ldw(8)) + issue('w9', ldw(9)): a(x)
        for x in issue(f'g{j}', ldg(j)): a(x)
        if j == 1:
            for x in reads(0): a(x)
    for j in range(14):
        c = j >> 1
        if j & 1 == 0:
            a(f"s_waitcnt vmcnt({need(f'g{j}')}) lgkmcnt(0)")
            if j == 0: stamp(a, cfg, 12)
            weave(a, mfmas(j), reads(j + 1), per=2)
        elif j < 13:
            a(f"s_waitcnt vmcnt({need(f'g{j}', f'w{j+1}', f'w{j+2}')}) lgkmcnt(0)\ns_barrier")
            ex = issue(f'w{j+9}', ldw(j+9)) + issue(f'w{j+10}', ldw(j+10)) if c < 2 else issue('h', [f"s_mov_b32 m0, s73\ns_nop 0\nbuffer_load_dwordx4 v20, {s(SH,4)}, s71 offen {LD} lds"]) if c == 2 else []
            weave(a, mfmas(j), reads(j + 1) + ex, per=2)
        else:
            a(f"s_waitcnt vmcnt(0) lgkmcnt(0)")
            m = mfmas(j)
            m = [m[i] for i in (5, 7, 1, 3, 4, 6, 0, 2)]
            fill = [f"ds_read_b64_tr_b16 v[{FA}:{FA+1}], v21", f"ds_read_b64_tr_b16 v[{FA+2}:{FA+3}], v21 offset:512"]
            for i in (1, 2, 3):
                fill.append(f"s_xor_b32 s76, s60, {2*i}\ns_mul_i32 s76, s76, 6144\ns_add_u32 s76, s76, {5*16384 + 2048*(i-1)}\nv_add_u32 v{AA+i}, s76, v{VL}")
            weave(a, m, fill)
    stamp(a, cfg, 13)
    a("s_nop 1")
    for i in (3, 2, 1):
        if i == 1: a("s_nop 3")
        a(f"ds_write_b128 v{AA+i}, {v(AC+8*i,4)}\nds_write_b128 v{AA+i}, {v(AC+8*i+4,4)} offset:1024")
    a("s_mov_b32 s70, 0xffff0000\ns_waitcnt lgkmcnt(6)")
    for i in range(4):
        a(f"v_lshlrev_b32 v{FA+8+2*i}, 16, v{FA+i}\nv_and_b32 v{FA+9+2*i}, s70, v{FA+i}")
    a("s_waitcnt lgkmcnt(0)\ns_barrier")
    for i in range(6): a(f"ds_read_b128 {v(GF+4*i,4)}, v22 offset:{1024*i}")
    for i in range(3):
        a(f"s_waitcnt lgkmcnt({4-2*i})")
        for p in range(4): a(f"v_pk_add_f32 {v(AC+2*p,2)}, {v(AC+2*p,2)}, {v(GF+8*i+2*p,2)}")
    for p in range(4): a(f"v_cvt_pk_bf16_f32 v{FA+p}, v{AC+2*p}, v{AC+2*p+1}")
    for p in range(4):
        a(f"v_lshlrev_b32 v{AC+2*p}, 16, v{FA+p}\nv_and_b32 v{AC+2*p+1}, s70, v{FA+p}")
    for p in range(4): a(f"v_pk_add_f32 {v(AC+2*p,2)}, {v(AC+2*p,2)}, {v(FA+8+2*p,2)}")
    for p in range(4): a(f"v_cvt_pk_bf16_f32 v{FA+p}, v{AC+2*p}, v{AC+2*p+1}")
    a(f"""s_nop 1
    v_permlane16_swap_b32 v{FA}, v{FA+2}
    v_permlane16_swap_b32 v{FA+1}, v{FA+3}
    buffer_store_dwordx4 {v(FA,4)}, v23, {s(SO,4)}, s75 offen {cfg.get('ost','')}""")
```

```python
import sys, os
sys.path.insert(0, os.path.dirname(os.path.abspath(__file__)))
from mk2 import *
NAME = 'sequential_preLN__ssm_conv_h3__geglu_ffn__prompt_kernel'
def build(cfg):
    cfg.setdefault('S', 16); cfg.setdefault('R', 8)
    a = Asm()
    a('.amdgcn_target "amdgcn-amd-amdhsa--gfx950"\n.text')
    kernel_head(a, NAME)
    a("s_cmp_ge_u32 s2, 256\ns_cbranch_scc1 L_end")
    load_args(a)
    if cfg.get('ts'): a("v_mov_b32 v255, 0")
    a(f"""v_lshrrev_b32 v1, 6, v0
    s_getpc_b64 s[40:41]
    L_pc:
    v_readfirstlane_b32 s88, v1
    s_mov_b32 s89, 0x40000
    s_cmp_ge_u32 s88, 4
    s_cbranch_scc1 L_nopf
    s_mov_b32 s42, L_code_end-L_pc
    s_mov_b32 s43, 0x00020000
    v_lshlrev_b32 v1, 7, v0
    buffer_load_dword v252, v1, s[40:43], 0 offen
    L_nopf:""")
    stamp(a, cfg, 0)
    a("s_waitcnt lgkmcnt(0)")
    srd(a, SY, WS, 128 * cfg['S'] * cfg['R'], add=WS_SY)
    a("s_cmp_lt_u32 s88, 4\ns_cbranch_scc1 L_conv")
    help_waves(a, cfg, p2_wpre)
    a("s_branch L_p2\nL_conv:")
    conv_waves(a, cfg)
    a("L_p2:")
    p2_body(a, cfg, 'L_spare')
    a("L_p3:")
    p3_body(a, cfg)
    if cfg.get('ts'):
        stamp(a, cfg, 14); a("s_waitcnt vmcnt(0)"); stamp(a, cfg, 15); stamp_flush(a, cfg, 0)
    a("L_end:\ns_endpgm\nL_spare:\ns_barrier")
    for x in p3_pre(a, cfg): a(x)
    a("s_branch L_p3\nL_code_end:")
    head = ("; H3 SSM-conv block + GeGLU FFN in one persistent launch (prep / long conv / gate+up / down)\n"
            "; @launch grid=(256,1,1) block=(512,1,1) lds=163840\n")
    return head + a.text() + '.section .rodata,"a"\n' + kernel_desc(NAME, 256, 256)
if __name__ == '__main__':
    cfg = {}
    for x in sys.argv[2:]:
        k, val = x.split('=')
        cfg[k] = int(val) if val.lstrip('-').isdigit() else val
    open(sys.argv[1], 'w').write(build(cfg))
```

```python
from asm import *
from p01 import *
NS = 6
P2_G, P2_U, P2_H = 0, NS * 8192, 2 * NS * 8192
P2_ST = P2_H + 2 * 8192
PB = P2_H
KW = 8448
L_U = PB + 4 * KW
L_CSR = L_U + 9216
L_CNT = 3 * NS * 8192
WS_SY = 7 << 20
SY = 84
LD = "sc1"

TAG = 's100'
PI = 's101'
def arrive_pre(a, cfg, word, line):
    LS = cfg['LS']
    a(f"""s_mul_i32 s90, {line}, {LS}
    s_add_u32 s90, s90, {4*word}
    s_lshl_b32 s91, {line}, 2
    s_add_u32 s91, s91, {256*LS + 256*word}
    v_mov_b32 v250, -1
    v_writelane_b32 v250, s90, 0
    {'v_writelane_b32 v250, s91, 1' if cfg.get('cmp', 3) >> (word//4) & 1 else ''}
    s_and_b32 s90, s2, 7
    s_mul_i32 s90, s90, {32*LS}
    v_and_b32 v243, 31, v0
    v_mul_u32_u24 v243, {LS}, v243
    v_add_u32 v243, s90, v243""")
def arrive(a, cfg):
    a(f"v_mov_b32 v251, {TAG}\nbuffer_store_dword v251, v250, {s(SY,4)}, 0 offen sc1")

def spin(a, ld, ck, first=True):
    L = a.label('poll'); E = a.label('pollx'); F = a.label('polly')
    a(f"""{'' if first else 's_branch ' + F}
    {L}:
    {ld}
    s_sub_u32 s89, s89, 1
    s_cbranch_scc1 {E}
    {F}:
    s_waitcnt vmcnt(0)
    {ck}
    s_cbranch_vccnz {L}
    {E}:
    s_max_i32 s89, s89, 0""")
def poll(a, cfg, word, one=None):
    if one:
        a(f"s_mul_i32 s90, {one}, {cfg['LS']}\nv_and_b32 v250, 15, v0\nv_min_u32 v250, 13, v250\nv_mul_u32_u24 v250, {cfg['LS']}, v250")
        spin(a, f"buffer_load_dword v251, v250, {s(SY,4)}, s90 offen offset:{4*word} sc1", f"v_cmp_ne_u32 vcc, {TAG}, v251")
    else:
        spin(a, f"buffer_load_dword v251, v243, {s(SY,4)}, 0 offen offset:{4*word} sc1", f"v_cmp_ne_u32 vcc, {TAG}, v251")
def poll_all(a, cfg, word, vl):
    a(f"s_mov_b32 s91, {256*cfg['LS'] + 256*word}")
    ck = "\n".join(f"v_xor_b32 v{244+i}, {TAG}, v{244+i}" for i in range(4))
    ck += "\nv_or_b32 v244, v244, v245\nv_or3_b32 v244, v244, v246, v247\nv_cmp_ne_u32 vcc, 0, v244"
    if cfg.get('cmp', 3) >> (word//4) & 1:
        spin(a, f"buffer_load_dwordx4 v[244:247], v{vl}, {s(SY,4)}, s91 offen sc1", ck)
    else:
        a(f"v_mul_u32_u24 v243, {cfg['LS']//4}, v{vl}")
        spin(a, "\n".join(f"buffer_load_dword v{244+i}, v243, {s(SY,4)}, 0 offen offset:{4*word+i*cfg['LS']} sc1" for i in range(4)), ck)

def flag_set(a, cfg, word, line_sgpr):
    a(f"""v_mov_b32 v251, {TAG}
    s_mul_i32 s90, {line_sgpr}, {cfg['LS']}
    s_mov_b64 exec, 1
    buffer_store_dword v251, off, {s(SY,4)}, s90 offset:{4*word} sc1
    s_mov_b64 exec, -1""")

def last_wave(a, slot, skip, n=4):
    a(f"""v_mov_b32 v244, {L_CNT + 4*slot}
    v_mov_b32 v251, 1
    s_mov_b64 exec, 1
    s_waitcnt vmcnt(0)
    ds_add_rtn_u32 v251, v244, v251
    s_mov_b64 exec, -1
    s_waitcnt lgkmcnt(0)
    v_readfirstlane_b32 s90, v251
    s_cmp_lg_u32 s90, {n-1}
    s_cbranch_scc1 {skip}""")

L_K, L_V, L_X = 0, 9216, 17408
SW = 48
def p0_common(a, cfg):
    srd(a, 32, Q, 2 << 20); srd(a, 36, K, 2 << 20); srd(a, 40, V, 2 << 20)
    a(f"""s_and_b32 s52, s2, 7
    s_lshr_b32 s54, s2, 6
    s_lshl_b32 s52, s52, 2
    s_add_u32 s52, s52, s54          ; rb
    s_bfe_u32 s53, s2, 0x30003
    v_and_b32 v2, 63, v0
    v_lshrrev_b32 v3, 3, v0          ; row
    v_and_b32 v1, 7, v0
    v_xor_b32 v5, s88, v1
    v_lshlrev_b32 v5, 4, v5
    v_lshl_add_u32 v5, v3, 10, v5
    s_lshl_b32 s54, s52, 16
    s_lshl_b32 s55, s53, 7
    s_add_u32 s54, s54, s55
    s_lshl_b32 s55, s88, 10
    s_add_u32 m0, s55, {L_K + 1024}
    v_lshlrev_b32 v4, 4, v2
    buffer_load_dwordx4 v5, s[36:39], s54 offen lds
    s_add_u32 m0, s55, {L_V}
    v_bfe_u32 v7, v0, 3, 5
    buffer_load_dwordx4 v5, s[40:43], s54 offen lds
    s_add_u32 m0, s55, {L_X}
    s_lshl_b32 s56, s53, 5
    buffer_load_dwordx4 v5, s[32:35], s54 offen lds""")
    srd(a, SW, WS, 5 << 20)
    a(f"""v_add_u32 v8, s56, v7            ; pair p
    s_lshl_b32 s56, s52, 3
    v_add_u32 v9, s56, v1            ; G
    v_lshlrev_b32 v10, 2, v1
    v_xor_b32 v10, v10, v7
    v_lshlrev_b32 v10, 2, v10
    v_lshl_add_u32 v10, v1, 10, v10
    s_lshl_b32 s74, s53, 5
    s_add_u32 s74, s74, s52
    s_and_b32 {PI}, s2, 7
    s_lshl_b32 {PI}, {PI}, 5
    s_lshr_b32 s57, s2, 3
    s_add_u32 {PI}, {PI}, s57
    s_movk_i32 s57, 0x1000
    s_mov_b32 s59, 0xffff0000""")

def sync_a(a, cfg):
    K2 = a.label('nopoll')
    arrive_pre(a, cfg, 0, 's74')
    if cfg.get('ts'): a("s_waitcnt vmcnt(0)")
    stamp(a, cfg, 2)
    last_wave(a, 0, K2, 8)
    arrive(a, cfg)
    poll(a, cfg, 0)
    a(f"s_lshl_b32 s90, {PI}, 13")
    for ch in range(2):
        a(f"s_mov_b32 m0, {L_U + 4608*ch + 512}\ns_nop 0")
        for j in range(4):
            a(f"buffer_load_dwordx4 v4, {s(SW,4)}, s90 offen offset:{1024*j} {LD} lds")
        if ch == 0: a("s_add_u32 s90, s90, 4096")
    poll_all(a, cfg, 0, 4)
    a(f"s_waitcnt vmcnt(0)\n{K2}:")

def conv_waves(a, cfg):
    SKR = 44
    A0, B0, C0 = 24, 152, 216
    SA, XR, OX = B0, B0 + 8, B0 + 16
    a(f"""s_lshl_b32 s60, s52, 6
    s_lshl_b32 s61, s53, 3
    s_add_u32 s60, s60, s61
    v_lshrrev_b32 v6, 5, v0
    v_add_u32 v6, s60, v6
    v_and_b32 v7, 31, v0
    v_lshlrev_b32 v3, 4, v7
    v_lshl_add_u32 v3, v6, 10, v3
    buffer_load_dwordx4 {v(SA,4)}, v3, s[32:35], 0 offen
    buffer_load_dwordx4 {v(SA+4,4)}, v3, s[32:35], 0 offen offset:512
    s_lshr_b32 s72, s88, 1           ; ch
    s_and_b32 s73, s88, 1            ; half
    s_lshl_b32 s62, {PI}, 1
    s_add_u32 s62, s62, s72          ; d
    s_lshl_b32 s62, s62, 12""")
    srd(a, SKR, SSK, 4096, add='s62')
    a(f"""s_mul_i32 s54, s88, {P1_KC1}
    s_add_u32 s54, s54, {PB}
    s_lshl_b32 s62, s73, 2
    v_lshl_add_u32 v3, v2, 2, s62
    v_subrev_u32 v3, 32, v3
    s_add_u32 m0, s54, 32
    v_add_u32 v5, s62, v4""")
    for j in range(4):
        a(f"buffer_load_dwordx4 v5, {s(SKR,4)}, 0 offen offset:{1024*j} lds")
    a(f"""s_mov_b32 m0, s54
    s_mul_i32 s54, s72, {KW}
    buffer_load_dword v3, {s(SKR,4)}, 0 offen lds
    s_add_u32 s54, s54, {PB}
    v_lshlrev_b32 v21, 13, v8
    v_lshl_add_u32 v21, v9, 4, v21
    v_add_u32 v21, {WS_XT}, v21
    v_lshlrev_b32 v6, 2, v6
    v_lshl_add_u32 v6, v7, 23, v6
    v_add_u32 v6, {WS_ST}, v6
    v_add_u32 v23, {L_X}, v10
    v_mov_b32 v9, {L_CNT}
    v_mov_b32 v10, 0
    v_mov_b32 v11, 0
    ds_write_b64 v9, v[10:11]""")
    npf = 0
    if cfg.get('pf_w', 0):
        nl = cfg.get('pf_w', 0) * 21
        a(f"""s_bitcmp1_b32 s88, 0
        s_cselect_b32 s68, s{WU}, s{WG}
        s_cselect_b32 s69, s{WU+1}, s{WG+1}
        s_cmp_lt_u32 s88, 2
        s_cselect_b32 s70, {512*3584}, 0
        s_mov_b32 s71, 0x00020000
        s_mul_i32 s64, s2, {nl*128}
        v_min_u32 v7, {nl-1}, v2
        v_lshlrev_b32 v7, 7, v7
        buffer_load_dword v252, v7, s[68:71], s64 offen""")
        npf = 1
    a(f"""s_mul_i32 s53, s72, 4608
    s_add_u32 s53, s53, {L_U}
    v_lshl_add_u32 v8, v2, 3, s53
    ds_write_b64 v8, v[10:11]
    v_and_b32 v9, 15, v2             ; m / n
    v_lshrrev_b32 v10, 4, v2         ; g
    v_add_u32 v11, 1, v9
    v_and_b32 v12, 1, v11
    v_lshlrev_b32 v12, 1, v12
    v_lshrrev_b32 v11, 1, v11
    v_and_b32 v13, 1, v11
    v_mul_u32_u24 v13, {P1_KC1}, v13
    v_and_b32 v11, 14, v11
    v_lshl_add_u32 v11, v10, 4, v11
    v_lshl_add_u32 v13, v11, 2, v13
    s_lshl_b32 s62, s73, 8
    s_add_u32 s62, s62, s54
    v_add_u32 v13, s62, v13
    v_lshlrev_b32 v14, 1, v9
    v_lshlrev_b32 v15, 2, v10
    v_sub_u32 v14, v14, v15
    s_lshl_b32 s63, s73, 4
    s_sub_u32 s63, 33, s63
    v_add_u32 v14, s63, v14""")
    for rho in range(4):
        a(f"""v_subrev_u32 v15, {rho}, v14
        v_bfe_u32 v20, v15, 4, 1
        v_xor_b32 v15, v15, v20
        v_lshl_add_u32 v{16+rho}, v15, 4, s53""")
    a(f"""v_lshrrev_b32 v14, 5, v2
    v_lshlrev_b32 v14, 7, v14
    v_xor_b32 v14, v14, v4
    s_lshl_b32 s63, s88, 13
    s_add_u32 s63, s63, {PB}
    v_add_u32 v22, s63, v14""")
    stamp(a, cfg, 6)
    a(f"""s_mov_b32 s60, 0x05040100
    s_mov_b32 s61, 0x07060302
    s_waitcnt vmcnt({npf}) lgkmcnt(0)
    s_add_u32 {TAG}, {TAG}, 1
    s_barrier""")
    stamp(a, cfg, 1)
    for i in range(4): a(f"ds_read2_b32 {v(XR+2*i,2)}, v23 offset0:{64*i} offset1:{64*i+32}")
    a("v_mov_b32 v14, 0\nv_mov_b32 v15, 0\nv_mov_b32 v20, 0x3f803f80")
    for i in range(8):
        a(f"v_dot2c_f32_bf16 v14, v{SA+i}, v20\nv_dot2c_f32_bf16 v15, v{SA+i}, v{SA+i}")
    a("s_waitcnt lgkmcnt(0)")
    for c in range(2):
        for i in range(4):
            a(f"v_perm_b32 v{OX+4*c+i}, v{XR+2*i+1}, v{XR+2*i}, s{60+c}")
    a(f"""buffer_store_dwordx4 {v(OX,4)}, v21, {s(SW,4)}, 0 offen {ST}
    buffer_store_dwordx4 {v(OX+4,4)}, v21, {s(SW,4)}, s57 offen {ST}""")
    for ctl in ("quad_perm:[1,0,3,2]", "quad_perm:[2,3,0,1]", "row_half_mirror", "row_mirror"):
        a(f"""v_add_f32_dpp v14, v14, v14 {ctl} row_mask:0xf bank_mask:0xf
        v_add_f32_dpp v15, v15, v15 {ctl} row_mask:0xf bank_mask:0xf
        s_nop 0""")
    a("""v_mov_b32 v20, v14
    v_mov_b32 v23, v15
    s_nop 1
    v_permlane16_swap_b32 v14, v20
    v_permlane16_swap_b32 v15, v23
    v_add_f32 v14, v14, v20
    v_add_f32 v15, v15, v23""")
    bf16_round_stats(a, 14, 15, 23, 20, 21, 512)
    a(f"buffer_store_dword v23, v6, {s(SW,4)}, 0 offen {ST}")
    def align(p):
        for i in range(16):
            hi = A0+16*p+i+1 if i < 15 else B0+32+p
            a(f"v_alignbyte_b32 v{A0+16*p+i}, v{hi}, v{A0+16*p+i}, v12")
    for p in range(8):
        for i in range(8):
            a(f"ds_read_b64 {v(A0+16*p+2*i,2)}, v13 offset:{512*p+8*i}")
        a(f"ds_read_b32 v{B0+32+p}, v13 offset:{512*p+64}")
        if p >= 1:
            a("s_waitcnt lgkmcnt(9)"); align(p - 1)
    a("s_waitcnt lgkmcnt(0)")
    align(7)
    sync_a(a, cfg)
    a("s_barrier")
    stamp(a, cfg, 3)
    def rdB(rho, q):
        a(f"ds_read_b128 {v(B0+32*(rho&1)+4*q,4)}, v{16+rho} offset:{512*q}")
    if cfg.get('prio', 1): a("s_setprio 2")
    for q in range(8): rdB(0, q)
    for rho in range(4):
        cnt = 0
        for q in range(8):
            nxt = min(cnt, 8) if rho < 3 else 0
            if rho == 0 or q == 0:
                a(f"s_waitcnt lgkmcnt({(7-q)+nxt if rho == 0 else 0})")
            for p in range(8 - q):
                c = v(C0+4*(p+q),4)
                a(f"v_mfma_f32_16x16x32_bf16 {c}, {v(A0+16*p+4*rho,4)}, {v(B0+32*(rho&1)+4*q,4)}, {c if rho or q else 0}")
                if rho < 3 and q >= 1 and cnt < 8 and p % 2 == 0:
                    rdB(rho + 1, cnt); cnt += 1
                if rho == 3 and p == 0 and q in (2, 3, 4, 5):
                    a(f"ds_write_b128 v22, {v(C0+4*(q-2),4)} offset:{1024*(q-2)}")
    a(f"ds_write_b128 v22, {v(C0+16,4)} offset:4096\ns_nop 1\nds_write_b128 v22, {v(C0+20,4)} offset:5120\ns_nop 1")
    a(f"ds_write_b128 v22, {v(C0+24,4)} offset:6144\ns_nop 1\nds_write_b128 v22, {v(C0+28,4)} offset:7168\ns_waitcnt lgkmcnt(0)")
    stamp(a, cfg, 4)
    if cfg.get('prio', 1): a("s_setprio 0")
    a("s_barrier")

def help_waves(a, cfg, wpre):
    SD, SH = 32, 36
    KR, VR, WR = 12, 24, 32
    WP, KP, UP, TP, OU = 48, 56, 78, 94, 96
    H = a.label('nohalo')
    srd(a, 44, SHK, 4096)
    a(f"""v_and_b32 v0, 0xff, v0
    v_lshlrev_b32 v3, 4, v8
    buffer_load_dwordx4 {v(WR,4)}, v3, s[44:47], 0 offen
    s_cmp_lg_u32 s88, 7
    s_cbranch_scc1 {H}
    s_mov_b32 m0, {L_K}
    v_add_u32 v5, s54, v5
    v_subrev_u32 v5, 0x10000, v5
    buffer_load_dwordx4 v5, s[36:39], 0 offen lds
    {H}:
    v_add_u32 v11, 7, v1
    v_and_b32 v11, 7, v11
    v_lshlrev_b32 v11, 2, v11
    v_xor_b32 v11, v11, v7
    v_lshlrev_b32 v11, 2, v11
    v_lshl_add_u32 v11, v1, 10, v11
    v_add_u32 v3, {L_V}, v10
    v_add_u32 v10, {L_K + 1024}, v10
    v_bfe_u32 v6, v9, 4, 1
    v_xor_b32 v6, v6, v9
    v_lshlrev_b32 v6, 4, v6
    v_lshl_add_u32 v6, v8, 13, v6
    s_waitcnt vmcnt(0) lgkmcnt(0)
    s_add_u32 {TAG}, {TAG}, 1""")
    a("s_barrier")
    stamp(a, cfg, 1)
    a(f"ds_read2_b32 {v(KR,2)}, v11 offset0:128 offset1:160\nds_read2_b32 {v(KR+2,2)}, v11 offset0:192 offset1:224")
    for i in range(4):
        a(f"ds_read2_b32 {v(KR+4+2*i,2)}, v10 offset0:{64*i} offset1:{64*i+32}")
        a(f"ds_read2_b32 {v(VR+2*i,2)}, v3 offset0:{64*i} offset1:{64*i+32}")
    for j in range(4):
        for c in range(2):
            r = WR + 2 * c + (j >> 1)
            a(f"v_lshlrev_b32 v{WP+2*j+c}, 16, v{r}" if j % 2 == 0 else f"v_and_b32 v{WP+2*j+c}, s59, v{r}")
    def unpack(dst, src):
        a(f"v_lshlrev_b32 v{dst}, 16, v{src}\nv_and_b32 v{dst+1}, s59, v{src}")
    a("s_waitcnt lgkmcnt(8)")
    for j in range(3): unpack(KP + 2 * j, KR + 1 + j)
    for j in range(8):
        if j % 2 == 0: a(f"s_waitcnt lgkmcnt({6-j})")
        unpack(KP + 2 * (3 + j), KR + 4 + j)
        unpack(TP, VR + j)
        u = v(UP + 2 * j, 2)
        a(f"v_pk_mul_f32 {u}, {v(KP+2*j,2)}, {v(WP+6,2)}")
        for t in (1, 2, 3):
            a(f"v_pk_fma_f32 {u}, {v(KP+2*(j+t),2)}, {v(WP+2*(3-t),2)}, {u}")
        a(f"v_pk_mul_f32 {u}, {u}, {v(TP,2)}")
    for c in range(2):
        for i in range(4):
            a(f"v_cvt_pk_bf16_f32 v{OU+4*c+i}, v{UP+2*(7-2*i)+c}, v{UP+2*(6-2*i)+c}")
        a(f"buffer_store_dwordx4 {v(OU+4*c,4)}, v6, {s(SW,4)}, {('0', 's57')[c]} offen {ST}")
    a(f"""s_bfe_u32 s53, s88, 0x10001      ; ch
    s_and_b32 s54, s88, 1            ; half
    s_lshl_b32 s55, {PI}, 1
    s_add_u32 s55, s55, s53          ; d""")
    srd(a, SD, SSD, 1024); srd(a, SH, WS, 2 << 20, add=WS_HT)
    XR, SR, UR, T, XN, YR = 24, 32, 48, 56, 72, 88
    a(f"""s_lshl_b32 s56, s55, 12
    s_lshl_b32 s57, s54, 11
    s_add_u32 s56, s56, s57
    s_add_u32 s56, s56, {WS_XT}
    s_lshl_b32 s58, s57, 1
    s_add_u32 s58, s58, {WS_ST}
    s_lshl_b32 s59, s55, 1
    v_lshlrev_b32 v5, 5, v2
    v_bfe_u32 v6, v2, 4, 1
    v_xor_b32 v6, v6, v2
    s_mul_i32 s60, s53, 4608
    s_add_u32 s60, s60, s57
    s_add_u32 s60, s60, {L_U + 512}
    v_lshl_add_u32 v6, v6, 4, s60    ; u address""")
    sync_a(a, cfg)
    a("s_barrier")
    stamp(a, cfg, 4)
    a(f"""buffer_load_dwordx4 {v(XR,4)}, v4, {s(SW,4)}, s56 offen {LD}
    buffer_load_dwordx4 {v(SR,4)}, v5, {s(SW,4)}, s58 offen {LD}
    buffer_load_dwordx4 {v(SR+4,4)}, v5, {s(SW,4)}, s58 offen offset:16 {LD}
    buffer_load_dwordx4 {v(XR+4,4)}, v4, {s(SW,4)}, s56 offen offset:1024 {LD}
    buffer_load_dwordx4 {v(SR+8,4)}, v5, {s(SW,4)}, s58 offen offset:2048 {LD}
    buffer_load_dwordx4 {v(SR+12,4)}, v5, {s(SW,4)}, s58 offen offset:2064 {LD}
    buffer_load_ushort v23, off, {s(SD,4)}, s59
    ds_read_b128 {v(UR,4)}, v6
    ds_read_b128 {v(UR+4,4)}, v6 offset:1024""")
    wl = wpre(a); n = cfg.get('wn', 8)
    for x in wl[:n]: a(x)
    wl = wl[n:]
    a(f"""v_and_b32 v9, 1, v2
    v_bfe_u32 v10, v2, 1, 4          ; n
    v_lshlrev_b32 v10, 4, v10
    v_mul_u32_u24 v11, 640, v9
    v_xor_b32 v10, v10, v11
    v_lshrrev_b32 v11, 5, v2
    v_lshl_add_u32 v10, v11, 10, v10
    s_lshl_b32 s60, s53, 14
    s_lshl_b32 s61, s54, 12
    s_add_u32 s60, s60, s61
    s_add_u32 s60, s60, {PB}
    v_add_u32 v10, s60, v10          ; y address
    v_bfe_u32 v11, v2, 1, 3
    s_and_b32 s60, s55, 7
    v_xor_b32 v11, s60, v11
    v_lshlrev_b32 v11, 5, v11
    v_lshl_add_u32 v11, v9, 4, v11
    v_lshrrev_b32 v9, 4, v2
    v_lshl_add_u32 v11, v9, 17, v11
    s_lshl_b32 s72, s54, 20
    s_lshl_b32 s73, s55, 8
    s_add_u32 s72, s72, s73
    s_add_u32 s73, s72, 0x80000
    s_mov_b32 s59, 0xffff0000
    s_waitcnt vmcnt({n}) lgkmcnt(0)
    v_lshlrev_b32 v23, 16, v23""")
    for e in range(16):
        j = e & 7; xs = XR + (e >> 1); us = UR + 4 * (e >> 3) + 3 - (j >> 1)
        a(f"v_lshlrev_b32 v{T+e}, 16, v{xs}" if j % 2 == 0 else f"v_and_b32 v{T+e}, s59, v{xs}")
        a(f"""v_and_b32 v20, s59, v{SR+e}
        v_rcp_f32 v20, v20
        v_lshlrev_b32 v21, 16, v{SR+e}
        v_sub_f32 v21, v{T+e}, v21
        v_mul_f32 v{XN+e}, v21, v20""")
        a(f"v_and_b32 v21, s59, v{us}" if j % 2 == 0 else f"v_lshlrev_b32 v21, 16, v{us}")
        a(f"v_mul_f32 v21, v21, v23\nv_fmac_f32 v{T+e}, v{XN+e}, v21")
        if wl: a(wl.pop(0))
    for x in wl: a(x)
    stamp(a, cfg, 5)
    a("s_barrier")
    for sp in range(2):
        for w in range(2):
            for gg in range(2):
                a(f"ds_read_b128 {v(YR+16*sp+8*w+4*gg,4)}, v10 offset:{8192*w+2048*sp+256*gg}")
    for sp in range(2):
        a(f"s_waitcnt lgkmcnt({4-4*sp})")
        y = YR + 16 * sp
        for p in range(4): a(f"v_pk_add_f32 {v(y+2*p,2)}, {v(y+2*p,2)}, {v(y+8+2*p,2)}")
        for p in range(4): a(f"v_pk_fma_f32 {v(y+2*p,2)}, {v(y+2*p,2)}, {v(XN+8*sp+2*p,2)}, {v(T+8*sp+2*p,2)}")
        for p in range(4): a(f"v_cvt_pk_bf16_f32 v{XR+4*sp+p}, v{y+2*p}, v{y+2*p+1}")
        a(f"buffer_store_dwordx4 {v(XR+4*sp,4)}, v11, {s(SH,4)}, s{72+sp} offen {ST}")
    a("v_or_b32 v0, 0x100, v0")
```

```python
from asm import *
from p01 import *
from mk1 import *
P2_LDS = P2_ST + 1024
P2_VGPR = 200
import struct, os
def fl(x): return hex(struct.unpack('<I', struct.pack('<f', x))[0])

def weave(a, mf, fill, start=0, per=1):
    fill = list(fill)
    for i, m in enumerate(mf):
        a(m)
        if i >= start:
            for _ in range(per):
                if fill: a(fill.pop(0))
    for f in fill: a(f)

MAP2 = """s_bfe_u32 s59, s2, 0x20001
    s_mul_i32 s59, s59, 28
    s_add_u32 s59, s59, s57
    s_and_b32 s58, s59, 7
    s_lshr_b32 s59, s59, 3
    s_and_b32 s56, s2, 1
    s_lshl_b32 s56, s56, 3
    s_add_u32 s58, s58, s56""" if int(os.environ.get('MAP2', 0)) else ''
def p2_ids(a):
    a(f"""s_and_b32 s56, s2, 7
    s_lshr_b32 s57, s2, 3
    s_and_b32 s58, s56, 3
    s_lshl_b32 s58, s58, 2
    s_and_b32 s59, s57, 3
    s_add_u32 s58, s58, s59          ; tb
    s_lshr_b32 s56, s56, 2
    s_mul_i32 s56, s56, 7
    s_lshr_b32 s59, s57, 2
    s_add_u32 s59, s59, s56          ; ft
    {MAP2}
    v_lshrrev_b32 v3, 4, v0
    v_bfe_u32 v13, v0, 1, 3
    v_xor_b32 v13, v13, v3
    v_and_b32 v13, 7, v13
    v_lshlrev_b32 v13, 5, v13
    v_and_b32 v15, 1, v0
    v_lshl_add_u32 v13, v15, 4, v13
    v_mul_u32_u24 v3, 3584, v3
    s_lshl_b32 s62, s59, 8
    v_add3_u32 v13, v13, v3, s62""")

def p2_wpre(a):
    p2_ids(a)
    srd(a, 64, WG, 512 * 3584); srd(a, 68, WU, 512 * 3584)
    a(f"""s_cmp_lt_u32 s57, 28
    s_cselect_b32 s66, s66, 0
    s_cselect_b32 s70, s70, 0
    s_lshl_b32 s63, s88, 10
    s_mov_b32 s62, 0""")
    r = []
    for i in range(2 * NS):
        r += [f"s_add_u32 m0, s63, {P2_G + 4096*(i-1)}\ns_nop 0\nbuffer_load_dwordx4 v13, s[64:67], s62 offen lds",
              f"s_add_u32 m0, s63, {P2_U + 4096*(i-1)}\ns_nop 0\nbuffer_load_dwordx4 v13, s[68:71], s62 offen lds\ns_add_u32 s62, s62, {16*3584}"]
    return r

def p2_body(a, cfg, spare):
    SH, SG, SU, SO, SC, SD = 32, 36, 40, 44, 48, 52
    AB, AG, AU = 4, 8, 10
    VH, VW, VL = 12, 13, 14
    S0, T0 = 16, 20
    CS, FR, AC = 24, 40, 104
    EP = 168
    p2_ids(a)
    K = a.label('nopoll')
    a(f"""v_and_b32 v2, 63, v0
    s_mov_b32 s60, s88
    s_lshl_b32 s61, s58, 17
    s_add_u32 s61, s61, {WS_HT}""")
    srd(a, SH, WS, 131072, add='s61'); srd(a, SG, WG, 512 * 3584); srd(a, SU, WU, 512 * 3584)
    a(f"""v_lshlrev_b32 v{VH}, 4, v0        ; 16l + 1024w
    s_lshl_b32 s63, s60, 10
    s_mov_b32 s64, 0
    s_mov_b32 s65, {NS*32*3584}""")
    def dma(st):
        sl = st % NS
        return [f"s_add_u32 m0, s63, {P2_G + sl*8192}\ns_nop 0\nbuffer_load_dwordx4 v{VW}, {s(SG,4)}, s65 offen lds",
                f"s_add_u32 m0, s63, {P2_U + sl*8192}\ns_nop 0\nbuffer_load_dwordx4 v{VW}, {s(SU,4)}, s65 offen lds",
                f"s_add_u32 m0, s63, {P2_H + sl*8192}\ns_add_u32 s65, s65, {32*3584}\nbuffer_load_dwordx4 v{VH}, {s(SH,4)}, s64 offen {LD} lds\ns_add_u32 s64, s64, 8192"]
    srd(a, SO, WS, 7 << 20, add=WS_G); srd(a, SC, WS, 24576, add=WS_CS); srd(a, SD, WD, 1792 * 1024)
    a(f"""s_and_b32 s66, s60, 1            ; th
    s_lshr_b32 s67, s60, 1           ; fq
    v_lshrrev_b32 v3, 2, v2          ; row = 4g+r
    v_and_b32 v15, 7, v3
    v_lshlrev_b32 v15, 5, v15
    v_lshl_add_u32 v15, v3, 8, v15
    v_and_b32 v3, 3, v2
    v_lshl_add_u32 v15, v3, 3, v15   ; base
    s_lshl_b32 s68, s66, 2
    s_add_u32 s68, s68, s67          ; 4th+fq
    s_lshl_b32 s69, s68, 5
    v_xor_b32 v{AB}, s69, v15
    v_add_u32 v{AB}, {P2_H}, v{AB}
    v_xor_b32 v{AB+1}, 32, v{AB}
    v_xor_b32 v{AB+2}, 64, v{AB}
    v_xor_b32 v{AB+3}, 0x60, v{AB}
    s_lshl_b32 s69, s67, 6
    v_xor_b32 v15, s69, v15
    v_add_u32 v{AG}, {P2_G}, v15
    v_xor_b32 v{AG+1}, 32, v{AG}
    v_add_u32 v{AU}, {P2_U}, v15
    v_xor_b32 v{AU+1}, 32, v{AU}
    v_lshlrev_b32 v{VL}, 4, v2
    s_mov_b32 s70, 0xffff0000
    s_lshl_b32 s71, s59, 9
    s_lshl_b32 s72, s67, 7
    s_add_u32 s71, s71, s72
    s_add_u32 s72, s71, {1792*4}
    s_lshl_b32 s73, s57, 16
    s_lshl_b32 s74, s58, 3
    s_lshl_b32 s75, s59, 2
    s_add_u32 s75, s75, s67          ; ks""")
    for b in range(4):
        a(f"s_xor_b32 s76, s68, {b}\ns_add_u32 s76, s76, s74\ns_mul_i32 s76, s76, 56\ns_add_u32 s76, s76, s75\ns_lshl_b32 s{80+b}, s76, 10")
    a(f"""s_sub_u32 s76, s58, s59
    s_add_u32 s76, s76, 32
    s_mul_i32 s76, s76, {cfg['LS']}
    s_mul_i32 s73, s59, {cfg['LS']}
    v_and_b32 v16, 1, v2
    v_mul_lo_u32 v16, v16, s76
    v_and_b32 v17, 0x30, v2
    v_and_b32 v18, 15, v2
    s_lshl_b32 s76, s68, 4
    v_add_lshl_u32 v18, v18, s76, 2
    s_lshl_b32 s69, s58, 9
    s_add_u32 s69, s69, 16384
    s_lshl_b32 s79, s58, 4
    s_add_u32 s79, s79, s59
    s_mov_b32 s77, {fl(-2.302208198)}
    s_mov_b32 s78, {fl(-0.1029432397)}""")
    p3_pre(a, cfg)
    def reads(st):
        o = (st % NS) * 8192; f = FR + 32 * (st & 1); r = []
        order = [(f, AG), (f+16, AB), (f+4, AG+1), (f+20, AB+1), (f+8, AU), (f+24, AB+2), (f+12, AU+1), (f+28, AB+3)]
        for d, ad in order:
            r += [f"ds_read_b64_tr_b16 {v(d,2)}, v{ad} offset:{o}", f"ds_read_b64_tr_b16 {v(d+2,2)}, v{ad} offset:{o+4096}"]
        return r
    def stats(st):
        f = FR + 32 * (st & 1) + 16; r = []
        for i in range(4):
            t = T0 + 2 * (i & 1)
            r += [f"v_lshlrev_b32 v{t}, 16, v{f+i}", f"v_and_b32 v{t+1}, s70, v{f+i}",
                  f"v_add_f32 v{S0}, v{S0}, v{t}", f"v_add_f32 v{S0+1}, v{S0+1}, v{t+1}",
                  f"v_fmac_f32 v{S0+2}, v{t}, v{t}", f"v_fmac_f32 v{S0+3}, v{t+1}, v{t+1}"]
        if cfg.get('x_nostat') and st < 15: r = [''] * 24
        return r
    ORD = [(0,0),(1,0),(0,1),(1,1),(2,0),(2,1),(0,2),(1,2),(2,2),(3,0),(3,1),(3,2),(0,3),(1,3),(2,3),(3,3)]
    LG = {0: 12, 1: 10, 2: 8, 4: 6, 6: 4, 9: 2, 12: 0}
    def mfmas(st):
        f = FR + 32 * (st & 1)
        return [f"v_mfma_f32_16x16x32_bf16 {v(AC+16*b+4*x,4)}, {v(f+4*x,4)}, {v(f+16+4*b,4)}, {v(AC+16*b+4*x,4) if st else 0}"
                for x, b in ORD]
    a(f"s_cmp_lt_u32 s88, 4\ns_cbranch_scc1 {K}")
    arrive_pre(a, cfg, 4, PI if cfg.get('bpi') else 's2')
    if cfg.get('ts'): a("s_waitcnt vmcnt(0)")
    stamp(a, cfg, 6)
    last_wave(a, 1, K)
    arrive(a, cfg)
    a(f"s_cmp_ge_u32 s57, 30\ns_cbranch_scc1 {K}")
    if not cfg.get('nogrp'): poll(a, cfg, 4)
    stamp(a, cfg, 3)
    poll_all(a, cfg, 4, VL)
    a(f"s_cmp_lg_u32 s2, 0\ns_cbranch_scc1 {K}")
    flag_set(a, cfg, 12, '0')
    a(f"{K}:\ns_barrier\ns_cmp_ge_u32 s57, 28\ns_cbranch_scc1 {spare}")
    stamp(a, cfg, 7)
    for st in range(NS):
        a(f"s_add_u32 m0, s63, {P2_H + st*8192}\ns_nop 0\nbuffer_load_dwordx4 v{VH}, {s(SH,4)}, s64 offen {LD} lds\ns_add_u32 s64, s64, 8192")
    nops = lambda lo, hi: sum(1 if x < NS else 3 for x in range(lo, hi + 1))
    a(f"s_waitcnt vmcnt({NS-1})\ns_barrier")
    stamp(a, cfg, 8)
    for x in reads(0): a(x)
    a(f"s_waitcnt vmcnt({NS-2})\ns_barrier")
    ops = [f'd{x}' for x in range(NS)]
    def need(*names):
        last = max([i for i, o in enumerate(ops) if o in names] + [-1])
        return len(ops) - 1 - last
    BP = cfg.get('p2_bp', 4)
    K0 = FR
    FS = cfg.get('p2_fs', 11)
    fld = f"buffer_load_dword v1, v16, {s(SY,4)}, s73 offen offset:36 sc1"
    for st in range(16):
        mf = mfmas(st); rd = reads(st + 1) if st < 15 else []; fill = []; sv = []
        nr = lambda i: i if st < 15 else 0
        if st == 15:
            b_ = Asm(); p3_addr(b_); sv = [x.strip() for x in b_.lines]
        for i in range(16):
            if i < BP and i in LG: a(f"s_waitcnt lgkmcnt({min(15, LG[i] + nr(i))})")
            if i == BP:
                for x in sv: a(x)
                sv = []
                a(f"s_waitcnt vmcnt({need(f'd{st+2}', 'flag', *(('cs', 'w3') if st == 15 else ()))}) lgkmcnt({nr(BP)})\ns_barrier")
                if st + NS <= 15:
                    fill = dma(st + NS); ops += [f'd{st+NS}'] * 3
                if st == FS:
                    fill += [fld]; ops.append('flag')
                if st == FS + 1:
                    L1 = a.label('csf'); L2 = a.label('csfx')
                    a(f"v_cmp_ne_u32 vcc, {TAG}, v1\ns_cbranch_vccz {L2}")
                    spin(a, fld, f"v_cmp_ne_u32 vcc, {TAG}, v1")
                    a(f"{L2}:")
                    fill += [f"buffer_load_dwordx4 {v(CS+4*x,4)}, v17, {s(SC,4)}, s{71+(x>>1)} offen offset:{64*(x&1)} {LD}\n"
                             f"v_xor_b32 v19, {64*x}, v18\nbuffer_load_dword v{T0+x}, v19, {s(SC,4)}, s69 offen {LD}" for x in range(4)]
                    ops += ['cs'] * 8
                for j in {10: (0, 1), 11: (2, 3), 12: (4,), 13: (5, 6), 14: (7,), 15: (8, 9)}.get(st, ()):
                    fill += ldw(j); ops += [f'w{j}'] * 2
                if st == 15:
                    rd = [x for j in range(4) for x in p3_reads(j)]
                    for b in range(4):
                        k = K0 + 4 * b
                        sv += [f"v_and_b32 v{k+1}, s70, v{T0+b}", f"v_rcp_f32 v{k+2}, v{k+1}", f"v_lshlrev_b32 v{k}, 16, v{T0+b}",
                               f"v_mul_f32 v{k+1}, v{k+1}, v{k+1}", f"v_mul_f32 v{k+3}, v{k+2}, v{k+2}", f"v_mul_f32 v{k+3}, s78, v{k+3}",
                               f"v_mul_f32 v{k+3}, v{k+3}, v{k+2}", f"v_mul_f32 v{k+2}, s77, v{k+2}"]
            a(mf[i])
            for _ in range(1 if st < 15 else 3):
                if rd: a(rd.pop(0))
            if fill and i % 2 == 0: a(fill.pop(0))
            for _ in range(3 if i >= BP else 5):
                if sv: a(sv.pop(0))
        assert not fill and not sv and not rd
    stamp(a, cfg, 9)
    late = [x for j in range(10, 14) for x in ldw(j)]
    for b in range(4):
        if b == cfg.get('p2_lb', 1): a("s_waitcnt lgkmcnt(0)\ns_barrier")
        def lw():
            if b >= cfg.get('p2_lb', 1) and late: a(late.pop(0))
        c = AC + 16 * b; km = v(K0 + 4 * b, 2); kk = v(K0 + 4 * b + 2, 2); t = EP + 8 * (b & 1); o = EP + 16 + 4 * b
        lw()
        P = range(4)
        for p in range(8): a(f"v_pk_fma_f32 {v(c+2*p,2)}, {v(CS+2*p,2)}, {km}, {v(c+2*p,2)} op_sel_hi:[1,0,1] neg_lo:[0,1,0] neg_hi:[0,1,0]")
        for p in P: a(f"v_pk_mul_f32 {v(t+2*p,2)}, {v(c+2*p,2)}, {v(c+2*p,2)}")
        lw()
        for p in P: a(f"v_pk_fma_f32 {v(t+2*p,2)}, {v(t+2*p,2)}, {kk}, {kk} op_sel:[0,1,0] op_sel_hi:[1,1,0]")
        for p in P: a(f"v_pk_mul_f32 {v(t+2*p,2)}, {v(t+2*p,2)}, {v(c+2*p,2)}")
        lw()
        for p in P: a(f"v_exp_f32 v{t+2*p}, v{t+2*p}\nv_exp_f32 v{t+2*p+1}, v{t+2*p+1}\nv_pk_mul_f32 {v(c+2*p,2)}, {v(c+2*p,2)}, {v(c+8+2*p,2)}")
        for p in P: a(f"v_pk_fma_f32 {v(t+2*p,2)}, {v(t+2*p,2)}, {km}, {km} op_sel:[0,1,1] op_sel_hi:[1,1,1]")
        for p in range(8): a(f"v_rcp_f32 v{t+p}, v{t+p}")
        lw()
        for p in P: a(f"v_pk_mul_f32 {v(c+2*p,2)}, {v(c+2*p,2)}, {v(t+2*p,2)}")
        for p in P: a(f"v_cvt_pk_bf16_f32 v{o+p}, v{c+2*p}, v{c+2*p+1}")
        a(f"buffer_store_dwordx4 {v(o,4)}, v{VL}, {s(SO,4)}, s{80+b} offen {ST}")
    assert not late
    stamp(a, cfg, 10)
    K = a.label('noarr')
    a(f"s_waitcnt vmcnt(0) lgkmcnt(0)\ns_barrier\ns_cmp_lg_u32 s88, 0\ns_cbranch_scc1 {K}")
    flag_set(a, cfg, 8, 's79')
    a(f"{K}:")

P3_LDS = 163840
P3_VGPR = 216
SLOT = [('H', 3), ('G', 4), ('G', 5), ('H', 2), ('G', 0), ('G', 1), ('H', 0), ('G', 2), ('G', 3), ('H', 1)]
def slot(j):
    k, i = SLOT[j % 10]
    return (0, i * 8192) if k == 'G' else (1, i * 16384)
def ldw(j):
    k, o = slot(j)
    return [f"s_add_u32 m0, {('s31', 's3')[k]}, {o}\ns_nop 0\nbuffer_load_dwordx4 v248, s[52:55], s30 offen lds",
            f"buffer_load_dwordx4 v249, s[52:55], s30 offen offset:1024 lds\ns_add_u32 s30, s30, 32768"]
def p3_pre(a, cfg):
    a(f"""v_lshrrev_b32 v3, 3, v2          ; row
    v_bfe_u32 v248, v2, 1, 2
    v_lshrrev_b32 v249, 4, v2
    v_xor_b32 v248, v248, v249
    v_lshlrev_b32 v248, 5, v248
    v_and_b32 v249, 1, v2
    v_lshl_add_u32 v248, v249, 4, v248
    v_lshl_add_u32 v248, v3, 10, v248
    v_add_u32 v249, 7168, v248
    s_mul_i32 s30, s67, {14*32768}
    s_lshl_b32 s3, s66, 14
    s_add_u32 s30, s30, s3
    s_lshr_b32 s3, s2, 5
    s_lshl_b32 s3, s3, 7
    s_add_u32 s30, s30, s3
    s_lshl_b32 s3, s88, 11
    s_lshr_b32 s31, s88, 2
    s_mul_i32 s31, s31, {49152-8192}
    s_add_u32 s31, s31, s3
    s_add_u32 s3, s3, {P2_H}""")
AA = 4
def p3_addr(a):
    a(f"""v_lshrrev_b32 v3, 2, v2          ; row = 4g+r
    v_bfe_u32 v12, v2, 3, 2
    s_and_b32 s76, s88, 2            ; 2*dp
    v_xor_b32 v12, s76, v12
    v_lshlrev_b32 v12, 5, v12
    v_lshl_add_u32 v12, v3, 7, v12
    v_and_b32 v3, 3, v2
    v_lshl_add_u32 v12, v3, 3, v12
    s_and_b32 s76, s31, 0xfffff000
    v_add_u32 v{AA}, s76, v12
    s_and_b32 s76, s3, 0xfffff000
    v_add_u32 v{AA+4}, s76, v12""")
    for x in range(1, 4): a(f"v_xor_b32 v{AA+x}, {32*x}, v{AA}\nv_xor_b32 v{AA+4+x}, {32*x}, v{AA+4}")
def p3_fa(j): return (56, 216, 232, 200)[j] if j < 4 else 72 + 16 * (j & 1)
def p3_reads(j):
    k, o = slot(j); f = p3_fa(j); r = []
    for x in range(4):
        r += [f"ds_read_b64_tr_b16 {v(f+4*x,2)}, v{AA+4*k+x} offset:{o}", f"ds_read_b64_tr_b16 {v(f+4*x+2,2)}, v{AA+4*k+x} offset:{o+2048}"]
    return r

def p3_body(a, cfg):
    SG, SH, SO = 36, 40, 44
    VL = 14
    FA, AC, GF = 56, 24, 104
    a(f"""s_and_b32 s56, s2, 7
    s_and_b32 s58, s56, 3
    s_lshl_b32 s58, s58, 1
    s_lshr_b32 s56, s56, 2
    s_add_u32 s58, s58, s56
    s_lshl_b32 s58, s58, 2
    s_and_b32 s59, s57, 3
    s_add_u32 s58, s58, s59
    s_lshr_b32 s59, s57, 2           ; d tile (64)
    s_and_b32 s61, s60, 1            ; th
    s_lshr_b32 s62, s60, 1           ; kq
    s_lshl_b32 s65, s58, 2
    s_lshl_b32 s66, s61, 1
    s_add_u32 s65, s65, s66
    s_lshr_b32 s66, s62, 1
    s_add_u32 s65, s65, s66
    s_xor_b32 s66, s65, 1
    s_mul_i32 s67, s62, 14
    s_mul_i32 s68, s65, 56
    s_mul_i32 s69, s66, 56
    s_add_u32 s68, s68, s67
    s_add_u32 s69, s69, s67
    s_lshl_b32 s68, s68, 10
    s_lshl_b32 s69, s69, 10
    s_and_b32 s70, s62, 1            ; dp""")
    srd(a, SG, WS, 7 << 20, add=WS_G)
    def ldg(j):
        r = [f"buffer_load_dwordx4 {v(GF+8*(j%12)+4*b,4)}, v{VL}, {s(SG,4)}, s{68+b} offen offset:{1024*(j&3)} {LD}" for b in range(2)]
        if j & 3 == 3: r[1] += "\ns_add_u32 s68, s68, 4096\ns_add_u32 s69, s69, 4096"
        return r
    srd(a, SH, WS, 2 << 20, add=WS_HT); srd(a, SO, OUT, 2 << 20)
    a(f"""v_lshrrev_b32 v3, 1, v2
    s_and_b32 s71, s65, 7
    v_xor_b32 v12, s71, v3
    v_and_b32 v12, 7, v12
    v_lshlrev_b32 v12, 5, v12
    v_lshl_add_u32 v12, v3, 8, v12
    v_and_b32 v3, 1, v2
    v_lshl_add_u32 v20, v3, 4, v12
    s_lshr_b32 s71, s65, 3
    s_lshl_b32 s71, s71, 17
    s_lshl_b32 s72, s59, 1
    s_add_u32 s72, s72, s70          ; d/32
    s_lshl_b32 s73, s72, 13
    s_add_u32 s71, s71, s73
    s_lshl_b32 s73, s60, 10
    s_add_u32 s73, s73, 16384
    v_lshl_add_u32 v21, v2, 3, s73
    s_lshl_b32 s74, s60, 11
    v_add_u32 v22, s74, v{VL}
    v_and_b32 v3, 15, v2
    v_lshlrev_b32 v3, 10, v3
    v_bfe_u32 v12, v2, 4, 1
    v_lshl_add_u32 v3, v12, 5, v3
    v_lshrrev_b32 v12, 5, v2
    v_lshl_add_u32 v23, v12, 4, v3
    s_lshl_b32 s75, s65, 14
    s_lshl_b32 s72, s72, 6
    s_add_u32 s75, s75, s72""")
    reads = p3_reads
    def mfmas(j):
        f = p3_fa(j)
        return [f"v_mfma_f32_16x16x32_bf16 {v(AC+16*b+4*x,4)}, {v(f+4*x,4)}, {v(GF+8*(j%12)+4*b,4)}, {v(AC+16*b+4*x,4) if j else 0}"
                for x in range(4) for b in range(2)]
    K = a.label('nopoll')
    a(f"s_cmp_lg_u32 s88, 0\ns_cbranch_scc1 {K}\ns_lshr_b32 s76, s58, 1\ns_lshl_b32 s76, s76, 4")
    poll(a, cfg, 8, one='s76')
    a(f"{K}:\ns_waitcnt vmcnt(0)\ns_barrier")
    stamp(a, cfg, 11)
    ops = []
    def issue(name, l):
        ops.extend([name] * len(l)); return l
    def need(*names):
        last = max([i for i, o in enumerate(ops) if o in names] + [-1])
        return len(ops) - 1 - last
    D = cfg.get('p3d', 4)
    for j in range(D):
        for x in issue(f'g{j}', ldg(j)): a(x)
    for j in range(14):
        if j < 13:
            a(f"s_waitcnt vmcnt({need(f'g{j}')}) lgkmcnt(0)")
            if j == 0: stamp(a, cfg, 12)
            ex = issue(f'g{j+D}', ldg(j+D)) if j + D < 14 else []
            if j == 7:
                a("s_barrier")
                ex += issue('h', [f"s_mov_b32 m0, s73\ns_nop 0\nbuffer_load_dwordx4 v20, {s(SH,4)}, s71 offen {LD} lds"])
            weave(a, mfmas(j), ex + (reads(j + 1) if j >= 3 else []), per=2)
        else:
            a(f"s_waitcnt vmcnt(0) lgkmcnt(0)")
            m = mfmas(j)
            m = [m[i] for i in (5, 7, 1, 3, 4, 6, 0, 2)]
            fill = [f"ds_read_b64_tr_b16 v[{FA}:{FA+1}], v21", f"ds_read_b64_tr_b16 v[{FA+2}:{FA+3}], v21 offset:512"]
            for i in (1, 2, 3):
                fill.append(f"s_xor_b32 s76, s60, {2*i}\ns_lshl_b32 s76, s76, 11\ns_add_u32 s76, s76, {49152*(i-1)}\nv_add_u32 v{AA+i}, s76, v{VL}")
            weave(a, m, fill)
    stamp(a, cfg, 13)
    a("s_nop 1")
    for i in (3, 2, 1):
        if i == 1: a("s_nop 3")
        a(f"ds_write_b128 v{AA+i}, {v(AC+8*i,4)}\nds_write_b128 v{AA+i}, {v(AC+8*i+4,4)} offset:1024")
    a("s_mov_b32 s70, 0xffff0000\nv_add_u32 v12, 98304, v22\ns_waitcnt lgkmcnt(6)")
    for i in range(4):
        a(f"v_lshlrev_b32 v{FA+8+2*i}, 16, v{FA+i}\nv_and_b32 v{FA+9+2*i}, s70, v{FA+i}")
    a("s_waitcnt lgkmcnt(0)\ns_barrier")
    for i in range(6): a(f"ds_read_b128 {v(GF+4*i,4)}, v{22 if i < 4 else 12} offset:{1024*(i&1) + 49152*((i>>1)&1)}")
    for i in range(3):
        a(f"s_waitcnt lgkmcnt({4-2*i})")
        for p in range(4): a(f"v_pk_add_f32 {v(AC+2*p,2)}, {v(AC+2*p,2)}, {v(GF+8*i+2*p,2)}")
    for p in range(4): a(f"v_cvt_pk_bf16_f32 v{FA+p}, v{AC+2*p}, v{AC+2*p+1}")
    for p in range(4):
        a(f"v_lshlrev_b32 v{AC+2*p}, 16, v{FA+p}\nv_and_b32 v{AC+2*p+1}, s70, v{FA+p}")
    for p in range(4): a(f"v_pk_add_f32 {v(AC+2*p,2)}, {v(AC+2*p,2)}, {v(FA+8+2*p,2)}")
    for p in range(4): a(f"v_cvt_pk_bf16_f32 v{FA+p}, v{AC+2*p}, v{AC+2*p+1}")
    a(f"""s_nop 1
    v_permlane16_swap_b32 v{FA}, v{FA+2}
    v_permlane16_swap_b32 v{FA+1}, v{FA+3}
    buffer_store_dwordx4 {v(FA,4)}, v23, {s(SO,4)}, s75 offen {cfg.get('ost','')}""")

def spare_body(a, cfg):
    K = a.label('done'); CSJ = a.label('csj')
    a(f"""s_cmp_ge_u32 s57, 30
    s_cbranch_scc1 {CSJ}
    s_and_b32 s61, s2, 3
    s_lshl_b32 s61, s61, 2
    s_bfe_u32 s62, s2, 0x10002
    s_lshl_b32 s62, s62, 1
    s_add_u32 s61, s61, s62
    s_add_u32 s61, s61, s57
    s_sub_u32 s61, s61, 28           ; tb
    s_lshl_b32 s62, s61, 17
    s_add_u32 s62, s62, {WS_HT}""")
    srd(a, 32, WS, 131072, add='s62')
    for st in range(16):
        a(f"s_add_u32 m0, s63, {st*8192}\ns_mov_b32 s64, {st*8192}\nbuffer_load_dwordx4 v12, s[32:35], s64 offen {LD} lds")
    a(f"""s_xor_b32 s62, s68, s88
    s_lshl_b32 s62, s62, 5
    v_xor_b32 v4, s62, v4
    v_subrev_u32 v4, {P2_H}, v4
    v_add_u32 v5, 0x10000, v4
    v_mov_b32 v16, 0
    v_mov_b32 v17, 0
    v_mov_b32 v20, 0x3f803f80
    s_lshl_b32 s62, s61, 9
    s_lshl_b32 s64, s88, 6
    s_add_u32 s62, s62, s64
    s_add_u32 s62, s62, 16384
    v_lshlrev_b32 v7, 2, v2
    v_and_b32 v8, 0x30, v2
    v_lshl_add_u32 v7, v8, 12, v7""")
    for h in range(2):
        a(f"s_waitcnt vmcnt({8-8*h})\ns_barrier")
        for st in range(8):
            a(f"ds_read_b64_tr_b16 {v(40+4*st,2)}, v{4+h} offset:{st*8192}\nds_read_b64_tr_b16 {v(42+4*st,2)}, v{4+h} offset:{st*8192+4096}")
        for r in range(32):
            if r % 8 == 0: a(f"s_waitcnt lgkmcnt({12-r//2})")
            a(f"v_dot2c_f32_bf16 v16, v{40+r}, v20\nv_dot2c_f32_bf16 v17, v{40+r}, v{40+r}")
    a("s_nop 2")
    for sw in (16, 32):
        a(f"""v_mov_b32 v18, v16
        v_mov_b32 v19, v17
        s_nop 1
        v_permlane{sw}_swap_b32 v16, v18
        v_permlane{sw}_swap_b32 v17, v19
        v_add_f32 v16, v16, v18
        v_add_f32 v17, v17, v19""")
    bf16_round_stats(a, 16, 17, 18, 19, 20, 512)
    a(f"""buffer_store_dword v18, v7, s[48:51], s62 offen {ST}
    s_add_u32 s72, s61, 32
    s_waitcnt vmcnt(0)
    s_barrier
    s_cmp_lg_u32 s88, 0
    s_cbranch_scc1 {K}""")
    flag_set(a, cfg, 9, 's72')
    a(f"""s_branch {K}
    {CSJ}:
    s_and_b32 s61, s2, 3
    s_lshl_b32 s61, s61, 1
    s_add_u32 s61, s61, s57
    s_sub_u32 s61, s61, 30
    s_cmp_ge_u32 s61, 7
    s_cbranch_scc1 {K}
    s_bfe_u32 s72, s2, 0x10002
    s_mul_i32 s72, s72, 7
    s_add_u32 s72, s72, s61          ; ft
    s_lshl_b32 s61, s72, 8
    s_mul_i32 s62, s88, {4*3584}
    s_add_u32 s61, s61, s62
    v_lshrrev_b32 v3, 4, v2
    v_mul_u32_u24 v3, 3584, v3
    v_and_b32 v7, 15, v2
    v_lshl_add_u32 v3, v7, 4, v3""")
    order = list(range(NS, 16)) + list(range(NS))
    for j in order:
        a(f"s_add_u32 s62, s61, {j*32*3584}\nbuffer_load_dwordx4 {v(40+8*j,4)}, v3, s[36:39], s62 offen\nbuffer_load_dwordx4 {v(44+8*j,4)}, v3, s[40:43], s62 offen")
    a("""v_mov_b32 v9, 0x3f80
    v_and_b32 v8, 1, v2
    v_lshlrev_b32 v8, 4, v8
    v_lshlrev_b32 v9, v8, v9
    v_bfe_u32 v8, v2, 1, 2""")
    for j in range(4):
        a(f"v_cmp_eq_u32 vcc, {j}, v8\ns_nop 1\nv_cndmask_b32 v{16+j}, 0, v9, vcc")
    a(f"""v_lshlrev_b32 v7, 5, v7
    v_and_b32 v8, 16, v2
    v_add3_u32 v7, v7, v8, s63""")
    for i, j in enumerate(order):
        a(f"s_waitcnt vmcnt({30-2*i})")
        for m in range(2): a(f"v_mfma_f32_16x16x32_bf16 {v(20+4*m,4)}, v[16:19], {v(40+8*j+4*m,4)}, {v(20+4*m,4) if i else 0}")
    a(f"""s_nop 7
    ds_write_b128 v7, v[20:23]
    ds_write_b128 v7, v[24:27] offset:512
    s_waitcnt lgkmcnt(0)
    s_barrier""")
    for w in range(8): a(f"ds_read_b128 {v(40+4*w,4)}, v14 offset:{1024*w}")
    a(f"""v_lshrrev_b32 v7, 5, v2
    v_mul_u32_u24 v7, {1792*4-512}, v7
    v_add_u32 v7, v7, v14
    s_lshl_b32 s62, s72, 9
    s_waitcnt lgkmcnt(0)
    s_barrier
    s_cmp_lg_u32 s88, 0
    s_cbranch_scc1 {K}""")
    for w in range(1, 8): a(f"v_pk_add_f32 v[40:41], v[40:41], {v(40+4*w,2)}\nv_pk_add_f32 v[42:43], v[42:43], {v(42+4*w,2)}")
    a(f"buffer_store_dwordx4 v[40:43], v7, s[48:51], s62 offen {ST}\ns_waitcnt vmcnt(0)")
    flag_set(a, cfg, 9, 's72')
    a(f"{K}:")
    for j in range(10):
        for x in ldw(j): a(x)
    p3_addr(a)
    a("s_waitcnt vmcnt(12)\ns_barrier")
    for j in range(4):
        for x in p3_reads(j): a(x)
    a("s_waitcnt lgkmcnt(0)\ns_barrier")
    for j in range(10, 14):
        for x in ldw(j): a(x)
```

```python
from asm import *
WS_UT = 0
WS_XT = 2 << 20
WS_ST = 4 << 20
WS_CS = (4 << 20) + 65536
WS_HT = 5 << 20
WS_G  = 8 << 20
WS_TS = 16 << 20
Q, K, V, SHK, SSK, SSD, BX, WG, WU, WD, OUT, DBG, WS = [4 + 2 * i for i in range(13)]
ST = "sc1"

def load_args(a):
    a("s_load_dwordx16 s[4:19], s[0:1], 0\ns_load_dwordx8 s[20:27], s[0:1], 64\ns_load_dwordx2 s[28:29], s[0:1], 96")

def stamp(a, cfg, slot, tmp=96):
    if cfg.get('hold') is not None:
        if slot == 0: a("s_memrealtime s[98:99]")
        if slot == cfg['hold']:
            L = a.label('hold')
            a(f"{L}:\ns_memrealtime s[96:97]\ns_waitcnt lgkmcnt(0)\ns_sub_u32 s96, s96, s98\ns_cmp_lt_u32 s96, {cfg['T']*100}\ns_cbranch_scc1 {L}")
    if not cfg.get('ts'): return
    a(f"{'s_memtime' if cfg['ts'] == 2 else 's_memrealtime'} s[{tmp}:{tmp+1}]\ns_waitcnt lgkmcnt(0)\nv_writelane_b32 v255, s{tmp}, {slot}")

def stamp_flush(a, cfg, kidx):
    if not cfg.get('ts'): return
    L = a.label('tsf')
    srd(a, 92, WS, 1 << 20, add=WS_TS)
    a(f"""s_lshl_b32 s96, s2, 9
    s_add_u32 s96, s96, {kidx * 256 * 512}
    v_lshrrev_b32 v253, 6, v0
    v_and_b32 v254, 63, v0
    v_lshlrev_b32 v253, 6, v253
    v_lshl_add_u32 v253, v254, 2, v253
    v_cmp_gt_u32 vcc, 16, v254
    s_and_saveexec_b64 s[98:99], vcc
    buffer_store_dword v255, v253, s[92:95], s96 offen
    s_mov_b64 exec, s[98:99]""")

def bf16_round_stats(a, vs, vq, vo, t0, t1, n):
    inv = {512: "0x3b000000"}[n]
    a(f"""v_mul_f32 v{vs}, {inv}, v{vs}
    v_mul_f32 v{vq}, {inv}, v{vq}
    v_fma_f32 v{vq}, -v{vs}, v{vs}, v{vq}
    v_max_f32 v{vq}, 0, v{vq}
    v_cvt_pk_bf16_f32 v{t0}, v{vq}, v{vq}
    v_lshlrev_b32 v{t0}, 16, v{t0}
    v_add_f32 v{t0}, 0x3727c5ac, v{t0}
    v_cvt_pk_bf16_f32 v{t0}, v{t0}, v{t0}
    v_lshlrev_b32 v{t0}, 16, v{t0}
    v_sqrt_f32 v{t0}, v{t0}
    s_nop 0
    v_cvt_pk_bf16_f32 v{vo}, v{vs}, v{t0}""")

def p0_body(a, cfg):
    SQ, SK, SV, SS, SW = 32, 36, 40, 44, 48
    srd(a, SQ, Q, 2 << 20); srd(a, SK, K, 2 << 20); srd(a, SV, V, 2 << 20); srd(a, SS, SHK, 4096); srd(a, SW, WS, 5 << 20)
    a("""s_and_b32 s52, s2, 7
    s_lshr_b32 s53, s2, 3
    s_lshr_b32 s54, s53, 2
    s_lshl_b32 s52, s52, 3
    s_add_u32 s52, s52, s54          ; rb
    s_and_b32 s53, s53, 3            ; cq
    s_movk_i32 s55, 0x1000
    v_and_b32 v1, 3, v0              ; rg
    v_lshrrev_b32 v2, 2, v0          ; w*16+pl
    s_lshl_b32 s54, s53, 6
    v_add_u32 v2, s54, v2            ; pair p
    s_lshl_b32 s56, s52, 2
    v_add_u32 v1, s56, v1
    v_lshlrev_b32 v3, 13, v1         ; row0*1024
    v_lshl_add_u32 v3, v2, 2, v3     ; voff
    v_subrev_u32 v4, 0xc00, v3
    v_lshlrev_b32 v5, 4, v2""")
    KR, VR, XR, WR = 8, 19, 27, 36
    SA = 40
    a(f"buffer_load_dwordx4 {v(WR,4)}, v5, {s(SS,4)}, 0 offen")
    for j in range(3):
        a(f"buffer_load_dword v{KR+j}, v4, {s(SK,4)}, 0 offen offset:{1024*j}")
    for j in range(8):
        so = '0' if j < 4 else 's55'
        a(f"buffer_load_dword v{KR+3+j}, v3, {s(SK,4)}, {so} offen offset:{1024*(j&3)}")
        a(f"buffer_load_dword v{VR+j}, v3, {s(SV,4)}, {so} offen offset:{1024*(j&3)}")
    for j in range(8):
        so = '0' if j < 4 else 's55'
        a(f"buffer_load_dword v{XR+j}, v3, {s(SQ,4)}, {so} offen offset:{1024*(j&3)}")
    a(f"""s_lshl_b32 s57, s52, 5
    s_lshl_b32 s58, s53, 3
    s_add_u32 s57, s57, s58
    v_lshrrev_b32 v6, 5, v0
    v_add_u32 v6, s57, v6
    v_and_b32 v7, 31, v0
    v_lshlrev_b32 v7, 4, v7
    v_lshl_add_u32 v7, v6, 10, v7
    buffer_load_dwordx4 {v(SA,4)}, v7, {s(SQ,4)}, 0 offen
    buffer_load_dwordx4 {v(SA+4,4)}, v7, {s(SQ,4)}, 0 offen offset:512""")
    npf = cfg.get('p0_extra', lambda a: 0)(a)
    a(f"""v_lshlrev_b32 v4, 13, v2         ; d*4096 (d=2p)
    v_lshl_add_u32 v5, v1, 4, v4
    v_lshrrev_b32 v7, 4, v1
    v_and_b32 v7, 1, v7
    v_xor_b32 v7, v7, v1
    v_lshl_add_u32 v4, v7, 4, v4
    v_add_u32 v5, {WS_XT}, v5
    v_lshlrev_b32 v6, 2, v6
    v_add_u32 v6, {WS_ST}, v6
    s_mov_b32 s59, 0xffff0000
    s_mov_b32 s60, 0x05040100
    s_mov_b32 s61, 0x07060302""")
    WP, KP, UP, TP = 48, 56, 78, 94
    OU, OX = 96, 104
    a(f"s_waitcnt vmcnt({24+2+npf})")
    for j in range(4):
        for c in range(2):
            r = WR + 2 * c + (j >> 1)
            a(f"v_lshlrev_b32 v{WP+2*j+c}, 16, v{r}" if j % 2 == 0 else f"v_and_b32 v{WP+2*j+c}, s59, v{r}")
    def unpack(dst, src):
        a(f"v_lshlrev_b32 v{dst}, 16, v{src}\nv_and_b32 v{dst+1}, s59, v{src}")
    for j in range(3):
        unpack(KP + 2 * j, KR + j)
    for j in range(8):
        a(f"s_waitcnt vmcnt({24+2+npf-2*(j+1)})")
        unpack(KP + 2 * (3 + j), KR + 3 + j)
        unpack(TP, VR + j)
        u = v(UP + 2 * j, 2)
        a(f"v_pk_mul_f32 {u}, {v(KP+2*j,2)}, {v(WP+6,2)}")
        for t in (1, 2, 3):
            a(f"v_pk_fma_f32 {u}, {v(KP+2*(j+t),2)}, {v(WP+2*(3-t),2)}, {u}")
        a(f"v_pk_mul_f32 {u}, {u}, {v(TP,2)}")
    for c in range(2):
        for i in range(4):
            a(f"v_cvt_pk_bf16_f32 v{OU+4*c+i}, v{UP+2*(7-2*i)+c}, v{UP+2*(6-2*i)+c}")
    a(f"""buffer_store_dwordx4 {v(OU,4)}, v4, {s(SW,4)}, 0 offen {ST}
    buffer_store_dwordx4 {v(OU+4,4)}, v4, {s(SW,4)}, s55 offen {ST}
    s_waitcnt vmcnt({2+2+npf})""")
    for c in range(2):
        for i in range(4):
            a(f"v_perm_b32 v{OX+4*c+i}, v{XR+2*i+1}, v{XR+2*i}, s{60+c}")
    a(f"""buffer_store_dwordx4 {v(OX,4)}, v5, {s(SW,4)}, 0 offen {ST}
    buffer_store_dwordx4 {v(OX+4,4)}, v5, {s(SW,4)}, s55 offen {ST}
    v_mov_b32 v8, 0
    v_mov_b32 v9, 0
    v_mov_b32 v10, 0x3f803f80
    s_waitcnt vmcnt({4+npf})""")
    for i in range(8):
        a(f"v_dot2c_f32_bf16 v8, v{SA+i}, v10\nv_dot2c_f32_bf16 v9, v{SA+i}, v{SA+i}")
    a("s_nop 2")
    for ctl in ("quad_perm:[1,0,3,2]", "quad_perm:[2,3,0,1]", "row_half_mirror", "row_mirror"):
        a(f"""v_add_f32_dpp v8, v8, v8 {ctl} row_mask:0xf bank_mask:0xf
        v_add_f32_dpp v9, v9, v9 {ctl} row_mask:0xf bank_mask:0xf
        s_nop 0""")
    a("""v_mov_b32 v10, v8
    v_mov_b32 v11, v9
    s_nop 1
    v_permlane16_swap_b32 v8, v10
    v_permlane16_swap_b32 v9, v11
    v_add_f32 v8, v8, v10
    v_add_f32 v9, v9, v11""")
    bf16_round_stats(a, 8, 9, 12, 10, 11, 512)
    a(f"""v_and_b32 v7, 31, v0
    v_cmp_eq_u32 vcc, 0, v7
    s_and_saveexec_b64 s[62:63], vcc
    buffer_store_dword v12, v6, {s(SW,4)}, 0 offen {ST}
    s_mov_b64 exec, s[62:63]""")

P1_KC0 = 0
P1_KC1 = 4224
P1_U = 8448
P1_X = 13056
P1_CH = 17152
P1_ST = 2 * P1_CH
P1_RED = P1_ST + 8192
P1_CSR = P1_RED + 16384
P1_LDS = P1_CSR + 256

def p1_body(a, cfg):
    SKR, SW, SD, SH = 32, 36, 40, 44
    A0, B0, C0 = 24, 152, 216
    a("""v_lshrrev_b32 v1, 6, v0
    v_and_b32 v2, 63, v0             ; lane
    s_nop 0
    v_readfirstlane_b32 s48, v1      ; wave
    s_lshr_b32 s49, s48, 1           ; ch
    s_and_b32 s50, s48, 1            ; half
    s_lshl_b32 s51, s2, 1
    s_add_u32 s51, s51, s49          ; d
    s_lshl_b32 s52, s51, 12          ; d*4096""")
    srd(a, SKR, SSK, 4096, add='s52'); srd(a, SW, WS, 5 << 20); srd(a, SD, SSD, 1024); srd(a, SH, WS, 2 << 20, add=WS_HT)
    a(f"""s_mul_i32 s53, s49, {P1_CH}
    s_mul_i32 s54, s50, {P1_KC1}
    s_add_u32 s54, s54, s53
    s_lshl_b32 s55, s50, 2           ; 4*half
    v_lshlrev_b32 v3, 2, v2
    v_add_u32 v3, s55, v3
    v_subrev_u32 v3, 32, v3
    v_lshlrev_b32 v4, 4, v2          ; 16*l
    v_add_u32 v5, s55, v4
    s_mov_b32 m0, s54
    s_add_u32 s56, s54, 32
    buffer_load_dword v3, {s(SKR,4)}, 0 offen lds
    s_mov_b32 m0, s56
    s_mul_i32 s57, s50, {P1_X - P1_U - 512}
    s_add_u32 s57, s57, s53""")
    for j in range(4):
        a(f"buffer_load_dwordx4 v5, {s(SKR,4)}, 0 offen offset:{1024*j} lds")
    a(f"""s_add_u32 s57, s57, {P1_U + 512}
    s_mov_b32 m0, s57
    s_lshl_b32 s58, s50, 21
    s_add_u32 s58, s58, s52""")
    cfg.get('p1_wait', lambda a: None)(a)
    for j in range(4):
        a(f"buffer_load_dwordx4 v4, {s(SW,4)}, s58 offen offset:{1024*j} lds {cfg.get('ld','')}")
    a(f"""s_lshl_b32 s59, s48, 11
    s_add_u32 s60, s59, {P1_ST}
    s_mov_b32 m0, s60
    s_add_u32 s59, s59, {WS_ST}
    s_lshl_b32 s61, s51, 1
    buffer_load_dwordx4 v4, {s(SW,4)}, s59 offen lds {cfg.get('ld','')}
    buffer_load_dwordx4 v4, {s(SW,4)}, s59 offen offset:1024 lds {cfg.get('ld','')}
    v_mov_b32 v6, 0
    buffer_load_ushort v23, v6, {s(SD,4)}, s61 offen""")
    a(f"""s_lshr_b32 s64, s2, 3
    s_cmp_ge_u32 s64, 14
    s_cselect_b32 s68, s{WU}, s{WG}
    s_cselect_b32 s69, s{WU+1}, s{WG+1}
    s_cselect_b32 s65, 14, 0
    s_cselect_b32 s76, {1792*4}, 0
    s_cmp_lt_u32 s64, 28
    s_cselect_b32 s70, {512*3584}, 0
    s_cselect_b32 s74, {3584*4}, 0
    s_mov_b32 s71, 0x00020000
    s_mov_b32 s75, 0x00020000
    s_add_u32 s72, s{WS}, {WS_CS}
    s_addc_u32 s73, s{WS+1}, 0
    s_sub_u32 s64, s64, s65
    s_lshl_b32 s64, s64, 2
    s_and_b32 s65, s2, 3
    s_add_u32 s64, s64, s65
    s_bfe_u32 s65, s2, 0x10002
    s_mul_i32 s65, s65, 56
    s_add_u32 s64, s64, s65
    s_lshl_b32 s65, s64, 6
    s_add_u32 s76, s76, s65
    s_lshl_b32 s64, s64, 5
    s_mul_i32 s65, s48, {128*3584}
    s_add_u32 s64, s64, s65
    v_lshrrev_b32 v7, 1, v2
    v_mul_u32_u24 v7, 3584, v7
    v_and_b32 v8, 1, v2
    v_lshl_add_u32 v7, v8, 4, v7""")
    for j in range(4):
        a(f"buffer_load_dwordx4 a[{4*j}:{4*j+3}], v7, s[68:71], s64 offen\ns_add_u32 s64, s64, {32*3584}")
    a("""v_mov_b32 v7, 0x3f80
    v_lshlrev_b32 v8, 4, v8
    v_lshlrev_b32 v7, v8, v7
    v_bfe_u32 v8, v2, 1, 2""")
    for j in range(4):
        a(f"v_cmp_eq_u32 vcc, {j}, v8\ns_nop 1\nv_cndmask_b32 v{248+j}, 0, v7, vcc")
    npf = 4 + cfg.get('p1_extra', lambda a: 0)(a)
    a(f"""v_mov_b32 v7, 0
    v_lshlrev_b32 v8, 3, v2
    v_add_u32 v8, s53, v8
    ds_write_b64 v8, v[6:7] offset:{P1_U}
    v_and_b32 v9, 15, v2             ; m / n
    v_lshrrev_b32 v10, 4, v2         ; g
    v_add_u32 v11, 1, v9             ; m+1
    v_and_b32 v12, 1, v11
    v_lshlrev_b32 v12, 1, v12
    v_lshrrev_b32 v11, 1, v11
    v_and_b32 v13, 1, v11
    v_mul_u32_u24 v13, {P1_KC1}, v13
    v_and_b32 v11, 14, v11
    v_lshl_add_u32 v11, v10, 4, v11
    v_lshl_add_u32 v13, v11, 2, v13
    s_lshl_b32 s62, s50, 8
    s_add_u32 s62, s62, s53
    v_add_u32 v13, s62, v13
    v_lshlrev_b32 v14, 1, v9
    v_lshlrev_b32 v15, 2, v10
    v_sub_u32 v14, v14, v15          ; 2n-4g
    s_lshl_b32 s63, s50, 4
    s_sub_u32 s63, 33, s63
    v_add_u32 v14, s63, v14""")
    for rho in range(4):
        a(f"""v_subrev_u32 v15, {rho}, v14
        v_bfe_u32 v20, v15, 4, 1
        v_xor_b32 v15, v15, v20
        v_lshlrev_b32 v15, 4, v15
        v_add_u32 v{16+rho}, s53, v15""")
    for i in range(32):
        a(f"v_mov_b32 v{C0+i}, 0")
    a(f"s_waitcnt vmcnt({7+npf})\ns_barrier")
    stamp(a, cfg, 1)
    for p in range(8):
        for i in range(8):
            a(f"ds_read_b64 {v(A0+16*p+2*i,2)}, v13 offset:{512*p+8*i}")
        a(f"ds_read_b32 v{B0+32+p}, v13 offset:{512*p+64}")
        if p >= 1:
            a("s_waitcnt lgkmcnt(9)")
            for i in range(16):
                hi = A0+16*(p-1)+i+1 if i < 15 else B0+32+p-1
                a(f"v_alignbyte_b32 v{A0+16*(p-1)+i}, v{hi}, v{A0+16*(p-1)+i}, v12")
    a(f"s_waitcnt vmcnt({npf}) lgkmcnt(0)\ns_barrier")
    stamp(a, cfg, 2)
    def rdB(rho, q):
        a(f"ds_read_b128 {v(B0+32*(rho&1)+4*q,4)}, v{16+rho} offset:{P1_U+512*q}")
    for q in range(8): rdB(0, q)
    for i in range(16):
        hi = A0+16*7+i+1 if i < 15 else B0+32+7
        a(f"v_alignbyte_b32 v{A0+16*7+i}, v{hi}, v{A0+16*7+i}, v12")
    for rho in range(4):
        cnt = 0
        for q in range(8):
            nxt = min(cnt, 8) if rho < 3 else 0
            if rho == 0 or q == 0:
                a(f"s_waitcnt lgkmcnt({(7-q)+nxt if rho == 0 else 0})")
            for p in range(8 - q):
                a(f"v_mfma_f32_16x16x32_bf16 {v(C0+4*(p+q),4)}, {v(A0+16*p+4*rho,4)}, {v(B0+32*(rho&1)+4*q,4)}, {v(C0+4*(p+q),4)}")
                if rho < 3 and q >= 1 and cnt < 8 and p % 2 == 0:
                    rdB(rho + 1, cnt); cnt += 1
        assert rho == 3 or cnt == 8
    stamp(a, cfg, 3)
    a(f"s_waitcnt vmcnt({npf-4})")
    for j in range(4):
        a(f"v_mfma_f32_16x16x32_bf16 {v(B0,4)}, v[248:251], a[{4*j}:{4*j+3}], {v(B0,4) if j else 0}")
    L = a.label('p1sw')
    a(f"""v_lshlrev_b32 v14, 2, v9
    v_add_u32 v14, v14, v10          ; 4n+g
    s_lshl_b32 s63, s50, 11
    s_add_u32 s62, s63, s53
    v_lshlrev_b32 v15, 3, v14
    v_add_u32 v15, s62, v15          ; X address
    v_lshrrev_b32 v20, 3, v9
    v_lshlrev_b32 v20, 1, v20
    v_xor_b32 v20, v20, v14
    v_xor_b32 v20, 1, v20
    v_lshlrev_b32 v20, 3, v20
    v_add_u32 v20, s62, v20          ; U address
    s_lshl_b32 s63, s63, 1
    v_lshlrev_b32 v21, 4, v14
    v_add_u32 v21, s63, v21          ; stats address
    s_lshl_b32 s63, s48, 12
    v_add_u32 v22, s63, v4
    v_xor_b32 v11, 0x1000, v22""")
    XR, UR, SR, RR = A0, A0 + 8, A0 + 16, A0 + 32
    for t in range(4):
        a(f"""ds_read_b64 {v(XR+2*t,2)}, v15 offset:{P1_X+512*t}
        ds_read_b64 {v(UR+2*t,2)}, v20 offset:{P1_U+512+512*t}
        ds_read_b128 {v(SR+4*t,4)}, v21 offset:{P1_ST+1024*t}""")
    a(f"s_cmp_eq_u32 s50, 0\ns_cbranch_scc1 {L}")
    for i in range(16):
        a(f"v_swap_b32 v{C0+i}, v{C0+16+i}")
    a(f"{L}:")
    for t in range(4):
        a(f"ds_write_b128 v22, {v(C0+16+4*t,4)} offset:{P1_RED+1024*t}")
    for ctl in ("quad_perm:[2,3,0,1]", "row_ror:4", "row_ror:8"):
        for j in range(4):
            a(f"v_add_f32_dpp v{B0+j}, v{B0+j}, v{B0+j} {ctl} row_mask:0xf bank_mask:0xf")
    a(f"""v_and_b32 v14, 1, v2
    v_and_b32 v15, 1, v10
    v_lshl_add_u32 v14, v14, 1, v15
    v_lshl_add_u32 v14, v1, 2, v14
    v_lshlrev_b32 v14, 4, v14
    v_lshlrev_b32 v13, 2, v9
    ds_write_b128 v14, {v(B0,4)} offset:{P1_CSR}""")
    a(f"""v_and_b32 v14, 7, v9
    s_and_b32 s63, s51, 7
    v_xor_b32 v14, s63, v14
    v_lshlrev_b32 v14, 5, v14
    v_lshrrev_b32 v15, 1, v10
    v_lshl_add_u32 v14, v15, 4, v14
    v_lshrrev_b32 v15, 3, v9
    v_and_b32 v20, 1, v10
    v_lshl_add_u32 v15, v20, 1, v15
    v_lshl_add_u32 v14, v15, 17, v14
    s_lshl_b32 s62, s50, 20
    s_lshl_b32 s63, s51, 8
    s_add_u32 s62, s62, s63
    s_add_u32 s63, s62, 0x80000
    s_mov_b32 s59, 0xffff0000
    v_lshlrev_b32 v23, 16, v23       ; D
    s_waitcnt lgkmcnt(0)
    s_barrier""")
    for t in range(4):
        a(f"ds_read_b128 {v(RR+4*t,4)}, v11 offset:{P1_RED+1024*t}")
    for t in range(4):
        a(f"ds_read_b32 v{B0+4+t}, v13 offset:{P1_CSR+64*t}")
    T = A0 + 48
    XN = T + 16
    for t in range(4):
        for j in range(4):
            e = 4 * t + j
            xs = XR + 2 * t + (j >> 1); us = UR + 2 * t + 1 - (j >> 1)
            a(f"v_lshlrev_b32 v{T+e}, 16, v{xs}" if j % 2 == 0 else f"v_and_b32 v{T+e}, s59, v{xs}")
            a(f"""v_and_b32 v20, s59, v{SR+e}
            v_rcp_f32 v20, v20
            v_lshlrev_b32 v21, 16, v{SR+e}
            v_sub_f32 v21, v{T+e}, v21
            v_mul_f32 v{XN+e}, v21, v20""")
            a(f"v_and_b32 v21, s59, v{us}" if j % 2 == 0 else f"v_lshlrev_b32 v21, 16, v{us}")
            a(f"v_fmac_f32 v{C0+e}, v21, v23")
    a("s_waitcnt lgkmcnt(0)")
    for e in range(16):
        a(f"v_add_f32 v{C0+e}, v{C0+e}, v{RR+e}\nv_fmac_f32 v{T+e}, v{XN+e}, v{C0+e}")
    for e in range(8):
        a(f"v_cvt_pk_bf16_f32 v{XR+e}, v{T+2*e}, v{T+2*e+1}")
    a(f"""s_nop 1
    v_permlane16_swap_b32 v{XR}, v{XR+2}
    v_permlane16_swap_b32 v{XR+1}, v{XR+3}
    v_permlane16_swap_b32 v{XR+4}, v{XR+6}
    v_permlane16_swap_b32 v{XR+5}, v{XR+7}
    buffer_store_dwordx4 {v(XR,4)}, v14, {s(SH,4)}, s62 offen {ST}
    buffer_store_dwordx4 {v(XR+4,4)}, v14, {s(SH,4)}, s63 offen {ST}
    v_add_f32 v{B0+4}, v{B0+4}, v{B0+5}
    v_add_f32 v{B0+6}, v{B0+6}, v{B0+7}
    v_and_b32 v15, 0xf0, v0
    v_lshl_add_u32 v13, v15, 12, v13    ; lanes >= 16 fall outside the record range
    v_add_f32 v{B0+4}, v{B0+4}, v{B0+6}
    buffer_store_dword v{B0+4}, v13, s[72:75], s76 offen {ST}""")
```

```python
import sys, os
sys.path.insert(0, os.path.dirname(os.path.abspath(__file__)))
from mk2 import *
NAME = 'sequential_preLN__ssm_conv_h3__geglu_ffn__prompt_kernel'
def build(cfg):
    cfg.setdefault('S', 256); cfg.setdefault('R', 8); cfg.setdefault('LS', 128)
    a = Asm()
    a('.amdgcn_target "amdgcn-amd-amdhsa--gfx950"\n.text')
    kernel_head(a, NAME)
    a("s_cmp_ge_u32 s2, 256\ns_cbranch_scc1 L_end")
    load_args(a)
    if cfg.get('ts'): a("v_mov_b32 v255, 0")
    a(f"""v_lshrrev_b32 v1, 6, v0
    s_getpc_b64 s[44:45]
    L_pc:
    v_readfirstlane_b32 s88, v1
    s_mov_b32 s89, 0x40000
    s_cmp_ge_u32 s88, 4
    s_cbranch_scc1 L_nopf
    s_mov_b32 s46, L_code_end-L_pc
    s_mov_b32 s47, 0x00020000
    v_lshlrev_b32 v1, 7, v0
    {'' if cfg.get('nopfc') else 'buffer_load_dword v252, v1, s[44:47], 0 offen'}
    L_nopf:""")
    stamp(a, cfg, 0)
    a("s_waitcnt lgkmcnt(0)")
    stamp(a, cfg, 5)
    p0_common(a, cfg)
    srd(a, SY, WS, cfg['LS'] * 256 + 2048, add=WS_SY)
    a(f"s_load_dword {TAG}, {s(SY,2)}, 48")
    a("s_cmp_lt_u32 s88, 4\ns_cbranch_scc1 L_conv")
    help_waves(a, cfg, p2_wpre)
    a("s_branch L_p2\nL_conv:")
    conv_waves(a, cfg)
    a("L_p2:")
    p2_body(a, cfg, 'L_spare')
    a("L_p3:")
    p3_body(a, cfg)
    if cfg.get('hold') == 14: stamp(a, cfg, 14)
    if cfg.get('ts'):
        stamp(a, cfg, 14); a("s_waitcnt vmcnt(0)"); stamp(a, cfg, 15); stamp_flush(a, cfg, 0)
        if cfg.get('dbg'):
            srd(a, 92, DBG, 64)
            a(f"""v_readlane_b32 s96, v255, 0
            s_lshl_b32 s97, s2, 12
            v_subrev_u32 v253, 256, v0
            v_lshl_add_u32 v253, v253, 2, s97
            v_subrev_u32 v255, s96, v255
            buffer_store_dword v255, v253, s[92:95], 0 offen""")
    a("L_end:\ns_endpgm\nL_spare:")
    spare_body(a, cfg)
    a("s_branch L_p3\nL_code_end:")
    head = ("; H3 SSM-conv block + GeGLU FFN in one persistent launch (prep / long conv / gate+up / down)\n"
            "; @launch grid=(256,1,1) block=(512,1,1) lds=163840\n")
    return head + a.text() + '.section .rodata,"a"\n' + kernel_desc(NAME, 256, 256)
if __name__ == '__main__':
    cfg = {}
    for x in sys.argv[2:]:
        k, val = x.split('=')
        cfg[k] = int(val) if val.lstrip('-').isdigit() else val
    open(sys.argv[1], 'w').write(build(cfg))
```

```python
from asm import *
from p01 import *
from mk1 import *
P2_LDS = P2_ST + 1024
P2_VGPR = 200
import struct, os
def fl(x): return hex(struct.unpack('<I', struct.pack('<f', x))[0])

def weave(a, mf, fill, start=0, per=1):
    fill = list(fill)
    for i, m in enumerate(mf):
        a(m)
        if i >= start:
            for _ in range(per):
                if fill: a(fill.pop(0))
    for f in fill: a(f)

MAP2 = """s_bfe_u32 s59, s2, 0x20001
    s_mul_i32 s59, s59, 28
    s_add_u32 s59, s59, s57
    s_and_b32 s58, s59, 7
    s_lshr_b32 s59, s59, 3
    s_and_b32 s56, s2, 1
    s_lshl_b32 s56, s56, 3
    s_add_u32 s58, s58, s56""" if int(os.environ.get('MAP2', 0)) else ''
def p2_ids(a):
    a(f"""s_and_b32 s56, s2, 7
    s_lshr_b32 s57, s2, 3
    s_and_b32 s58, s56, 3
    s_lshl_b32 s58, s58, 2
    s_and_b32 s59, s57, 3
    s_add_u32 s58, s58, s59          ; tb
    s_lshr_b32 s56, s56, 2
    s_mul_i32 s56, s56, 7
    s_lshr_b32 s59, s57, 2
    s_add_u32 s59, s59, s56          ; ft
    {MAP2}
    v_lshrrev_b32 v3, 4, v0
    v_bfe_u32 v13, v0, 1, 3
    v_xor_b32 v13, v13, v3
    v_and_b32 v13, 7, v13
    v_lshlrev_b32 v13, 5, v13
    v_and_b32 v15, 1, v0
    v_lshl_add_u32 v13, v15, 4, v13
    v_mul_u32_u24 v3, 3584, v3
    s_lshl_b32 s62, s59, 8
    v_add3_u32 v13, v13, v3, s62""")

def p2_wpre(a):
    p2_ids(a)
    srd(a, 64, WG, 512 * 3584); srd(a, 68, WU, 512 * 3584)
    a(f"""s_cmp_lt_u32 s57, 28
    s_cselect_b32 s66, s66, 0
    s_cselect_b32 s70, s70, 0
    s_lshl_b32 s63, s88, 10
    s_mov_b32 s62, 0""")
    r = []
    for i in range(2 * NS):
        r += [f"s_add_u32 m0, s63, {P2_G + 4096*(i-1)}\ns_nop 0\nbuffer_load_dwordx4 v13, s[64:67], s62 offen lds",
              f"s_add_u32 m0, s63, {P2_U + 4096*(i-1)}\ns_nop 0\nbuffer_load_dwordx4 v13, s[68:71], s62 offen lds\ns_add_u32 s62, s62, {16*3584}"]
    return r

def g_off(a, cfg, kq, tile):
    if cfg.get('nogx'):
        a("v_mov_b32 v253, v14\nv_mov_b32 v254, v14"); return
    a(f"""s_and_b32 s98, {tile}, 1
    s_lshl1_add_u32 s98, {kq}, s98
    s_lshl_b32 s98, s98, 7
    s_add_u32 s98, s98, {(16 << 20) - 384}
    v_lshrrev_b32 v3, 3, v2
    v_cmp_eq_u32 vcc, 3, v3
    v_add_u32 v253, s98, v14
    v_xor_b32 v254, 0x80, v253
    v_cndmask_b32 v253, v14, v253, vcc
    v_cndmask_b32 v254, v14, v254, vcc""")

def p2_body(a, cfg, spare):
    SH, SG, SU, SO, SC, SD = 32, 36, 40, 44, 48, 52
    AB, AG, AU = 4, 8, 10
    VH, VW, VL = 12, 13, 14
    S0, T0 = 16, 20
    CS, FR, AC = 24, 40, 104
    EP = 168
    p2_ids(a)
    K = a.label('nopoll')
    a(f"""v_and_b32 v2, 63, v0
    s_mov_b32 s60, s88
    s_lshl_b32 s61, s58, 17
    s_add_u32 s61, s61, {WS_HT}""")
    srd(a, SH, WS, 131072, add='s61'); srd(a, SG, WG, 512 * 3584); srd(a, SU, WU, 512 * 3584)
    a(f"""v_lshlrev_b32 v{VH}, 4, v0        ; 16l + 1024w
    s_lshl_b32 s63, s60, 10
    s_mov_b32 s64, 0
    s_mov_b32 s65, {NS*32*3584}""")
    def dma(st):
        sl = st % NS
        return [f"s_add_u32 m0, s63, {P2_G + sl*8192}\ns_nop 0\nbuffer_load_dwordx4 v{VW}, {s(SG,4)}, s65 offen lds",
                f"s_add_u32 m0, s63, {P2_U + sl*8192}\ns_nop 0\nbuffer_load_dwordx4 v{VW}, {s(SU,4)}, s65 offen lds",
                f"s_add_u32 m0, s63, {P2_H + sl*8192}\ns_add_u32 s65, s65, {32*3584}\nbuffer_load_dwordx4 v{VH}, {s(SH,4)}, s64 offen {LD} lds\ns_add_u32 s64, s64, 8192"]
    srd(a, SO, WS, 23 << 20, add=WS_G); srd(a, SC, WS, 24576, add=WS_CS); srd(a, SD, WD, 1792 * 1024)
    a(f"""s_and_b32 s66, s60, 1            ; th
    s_lshr_b32 s67, s60, 1           ; fq
    v_lshrrev_b32 v3, 2, v2          ; row = 4g+r
    v_and_b32 v15, 7, v3
    v_lshlrev_b32 v15, 5, v15
    v_lshl_add_u32 v15, v3, 8, v15
    v_and_b32 v3, 3, v2
    v_lshl_add_u32 v15, v3, 3, v15   ; base
    s_lshl_b32 s68, s66, 2
    s_add_u32 s68, s68, s67          ; 4th+fq
    s_lshl_b32 s69, s68, 5
    v_xor_b32 v{AB}, s69, v15
    v_add_u32 v{AB}, {P2_H}, v{AB}
    v_xor_b32 v{AB+1}, 32, v{AB}
    v_xor_b32 v{AB+2}, 64, v{AB}
    v_xor_b32 v{AB+3}, 0x60, v{AB}
    s_lshl_b32 s69, s67, 6
    v_xor_b32 v15, s69, v15
    v_add_u32 v{AG}, {P2_G}, v15
    v_xor_b32 v{AG+1}, 32, v{AG}
    v_add_u32 v{AU}, {P2_U}, v15
    v_xor_b32 v{AU+1}, 32, v{AU}
    v_lshlrev_b32 v{VL}, 4, v2
    s_mov_b32 s70, 0xffff0000
    s_lshl_b32 s71, s59, 9
    s_lshl_b32 s72, s67, 7
    s_add_u32 s71, s71, s72
    s_add_u32 s72, s71, {1792*4}
    s_lshl_b32 s73, s57, 16
    s_lshl_b32 s74, s58, 3
    s_lshl_b32 s75, s59, 2
    s_add_u32 s75, s75, s67          ; ks""")
    for b in range(4):
        a(f"s_xor_b32 s76, s68, {b}\ns_add_u32 s76, s76, s74\ns_mul_i32 s76, s76, 56\ns_add_u32 s76, s76, s75\ns_lshl_b32 s{80+b}, s76, 10")
    a(f"""s_sub_u32 s76, s58, s59
    s_add_u32 s76, s76, 32
    s_mul_i32 s76, s76, {cfg['LS']}
    s_mul_i32 s73, s59, {cfg['LS']}
    v_and_b32 v16, 1, v2
    v_mul_lo_u32 v16, v16, s76
    v_and_b32 v17, 0x30, v2
    v_and_b32 v18, 15, v2
    s_lshl_b32 s76, s68, 4
    v_add_lshl_u32 v18, v18, s76, 2
    s_lshl_b32 s69, s58, 9
    s_add_u32 s69, s69, 16384
    s_lshl_b32 s79, s58, 4
    s_add_u32 s79, s79, s59
    s_mov_b32 s77, {fl(-2.302208198)}
    s_mov_b32 s78, {fl(-0.1029432397)}""")
    a("s_mul_i32 s99, s75, 4682\ns_lshr_b32 s99, s99, 16")
    g_off(a, cfg, 's99', 's68')
    p3_pre(a, cfg)
    p3_addr(a, EP, EP + 8)
    def reads(st):
        o = (st % NS) * 8192; f = FR + 32 * (st & 1); r = []
        order = [(f, AG), (f+16, AB), (f+4, AG+1), (f+20, AB+1), (f+8, AU), (f+24, AB+2), (f+12, AU+1), (f+28, AB+3)]
        for d, ad in order:
            r += [f"ds_read_b64_tr_b16 {v(d,2)}, v{ad} offset:{o}", f"ds_read_b64_tr_b16 {v(d+2,2)}, v{ad} offset:{o+4096}"]
        return r
    def stats(st):
        f = FR + 32 * (st & 1) + 16; r = []
        for i in range(4):
            t = T0 + 2 * (i & 1)
            r += [f"v_lshlrev_b32 v{t}, 16, v{f+i}", f"v_and_b32 v{t+1}, s70, v{f+i}",
                  f"v_add_f32 v{S0}, v{S0}, v{t}", f"v_add_f32 v{S0+1}, v{S0+1}, v{t+1}",
                  f"v_fmac_f32 v{S0+2}, v{t}, v{t}", f"v_fmac_f32 v{S0+3}, v{t+1}, v{t+1}"]
        if cfg.get('x_nostat') and st < 15: r = [''] * 24
        return r
    ORD = [(0,0),(1,0),(0,1),(1,1),(2,0),(2,1),(0,2),(1,2),(2,2),(3,0),(3,1),(3,2),(0,3),(1,3),(2,3),(3,3)]
    LG = {0: 12, 1: 10, 2: 8, 4: 6, 6: 4, 9: 2, 12: 0}
    def mfmas(st):
        f = FR + 32 * (st & 1)
        return [f"v_mfma_f32_16x16x32_bf16 {v(AC+16*b+4*x,4)}, {v(f+4*x,4)}, {v(f+16+4*b,4)}, {v(AC+16*b+4*x,4) if st else 0}"
                for x, b in ORD]
    KH = a.label('hw')
    a(f"s_add_u32 s30, s30, 65536\ns_barrier\ns_cmp_ge_u32 s88, 4\ns_cbranch_scc1 {KH}\ns_cmp_ge_u32 s57, 28\ns_cbranch_scc1 {K}")
    for j in range(2):
        for hf in range(2):
            a(f"s_add_u32 m0, s3, {slot(j)[1] + 8192*hf}\ns_add_u32 s76, s30, {(j - 2 + 28*hf)*32768 & 0xffffffff}\n"
              f"buffer_load_dwordx4 v248, s[52:55], s76 offen lds\nbuffer_load_dwordx4 v249, s[52:55], s76 offen offset:1024 lds")
    a(f"s_waitcnt vmcnt(0)\ns_branch {K}\n{KH}:")
    arrive_pre(a, cfg, 4, PI if cfg.get('bpi') else 's2')
    if cfg.get('ts'): a("s_waitcnt vmcnt(0)")
    stamp(a, cfg, 6)
    last_wave(a, 1, K)
    arrive(a, cfg)
    a(f"s_cmp_ge_u32 s57, 30\ns_cbranch_scc1 {K}")
    if not cfg.get('nogrp'): poll(a, cfg, 4)
    stamp(a, cfg, 3)
    poll_all(a, cfg, 4, VL)
    a(f"s_cmp_lg_u32 s2, 0\ns_cbranch_scc1 {K}")
    flag_set(a, cfg, 12, '0')
    a(f"{K}:\ns_barrier\ns_cmp_ge_u32 s57, 28\ns_cbranch_scc1 {spare}")
    stamp(a, cfg, 7)
    for st in range(NS):
        if st == 2:
            for x in p3_reads(0, EP) + p3_reads(1, EP): a(x)
            a("s_waitcnt lgkmcnt(0)\ns_barrier")
        a(f"s_add_u32 m0, s63, {P2_H + st*8192}\ns_nop 0\nbuffer_load_dwordx4 v{VH}, {s(SH,4)}, s64 offen {LD} lds\ns_add_u32 s64, s64, 8192")
    nops = lambda lo, hi: sum(1 if x < NS else 3 for x in range(lo, hi + 1))
    a(f"s_waitcnt vmcnt({NS-1})\ns_barrier")
    stamp(a, cfg, 8)
    for x in reads(0): a(x)
    a(f"s_waitcnt vmcnt({NS-2})\ns_barrier")
    ops = [f'd{x}' for x in range(NS)]
    def need(*names):
        last = max([i for i, o in enumerate(ops) if o in names] + [-1])
        return len(ops) - 1 - last
    BP = cfg.get('p2_bp', 4)
    K0 = FR
    FS = cfg.get('p2_fs', 11)
    w2, w3 = cfg.get('w2', 2), cfg.get('w3', 10)
    WS_ = {w2: (2,), 10: (4,), 11: (5, 6), 12: (7,), 13: (8, 9), 14: (10,), 15: (11, 12)}
    WS_[w3] = (3,) + WS_.get(w3, ())
    WR = {w2 + 3: 2, 15: 3}
    JL = max(max(x) for x in WS_.values()) + 1
    fld = f"buffer_load_dword v1, v16, {s(SY,4)}, s73 offen offset:36 sc1"
    for st in range(16):
        mf = mfmas(st); rd = reads(st + 1) if st < 15 else []; fill = []; sv = []; xr = []
        nr = lambda i: i if st < 15 else 0
        if st == 15:
            sv = [f"v_mov_b32 v{4+x}, v{EP+x}" for x in range(8)]
        for i in range(16):
            if i < BP and i in LG: a(f"s_waitcnt lgkmcnt({min(15, LG[i] + nr(i))})")
            if i == BP:
                for x in sv: a(x)
                sv = []
                a(f"s_waitcnt vmcnt({need(f'd{st+2}', 'flag', f'w{WR.get(st)}', *(('cs',) if st == 15 else ()))}) lgkmcnt({nr(BP)})\n" + ('' if st % cfg.get('x_nb', 1) else 's_barrier'))
                if st < 10:
                    for j in WS_.get(st, ()):
                        fill += ldw(j); ops += [f'w{j}'] * 2
                    if st in WR: xr = p3_reads(WR[st], EP)
                if st + NS <= 15:
                    fill += dma(st + NS); ops += [f'd{st+NS}'] * 3
                if st == FS:
                    fill += [fld]; ops.append('flag')
                if st == FS + 1:
                    L1 = a.label('csf'); L2 = a.label('csfx')
                    a(f"v_cmp_ne_u32 vcc, {TAG}, v1\ns_cbranch_vccz {L2}")
                    spin(a, fld, f"v_cmp_ne_u32 vcc, {TAG}, v1")
                    a(f"{L2}:")
                    fill += [f"buffer_load_dwordx4 {v(CS+4*x,4)}, v17, {s(SC,4)}, s{71+(x>>1)} offen offset:{64*(x&1)} {LD}\n"
                             f"v_xor_b32 v19, {64*x}, v18\nbuffer_load_dword v{T0+x}, v19, {s(SC,4)}, s69 offen {LD}" for x in range(4)]
                    ops += ['cs'] * 8
                for j in (WS_.get(st, ()) if st >= 10 else ()):
                    fill += ldw(j); ops += [f'w{j}'] * 2
                if st == 15:
                    rd = p3_reads(3)
                    for b in range(4):
                        k = K0 + 4 * b
                        sv += [f"v_and_b32 v{k+1}, s70, v{T0+b}", f"v_rcp_f32 v{k+2}, v{k+1}", f"v_lshlrev_b32 v{k}, 16, v{T0+b}",
                               f"v_mul_f32 v{k+1}, v{k+1}, v{k+1}", f"v_mul_f32 v{k+3}, v{k+2}, v{k+2}", f"v_mul_f32 v{k+3}, s78, v{k+3}",
                               f"v_mul_f32 v{k+3}, v{k+3}, v{k+2}", f"v_mul_f32 v{k+2}, s77, v{k+2}"]
            a(mf[i])
            if rd: a(rd.pop(0))
            if xr: a(xr.pop(0))
            if i == BP:
                f0, f1 = cfg.get('f0', BP), cfg.get('f1', 0)
                if len(fill) > 16 - f0: f0 = BP
                pos = [f0 + (k * (f1 - f0)) // max(len(fill) - 1, 1) for k in range(len(fill))] if f1 else range(BP + (BP & 1), 16, 2)
            AP = cfg.get('ap', 0)
            if AP and fill and i in (cfg.get('ap0', BP), AP):
                if i < AP and st in (0, FS + 1): a(f"s_cmp_lt_u32 s88, 4\ns_cselect_b64 vcc, {'0, -1' if cfg.get('apx') else '-1, 0'}\ns_nop 0")
                L = a.label('ap')
                a(f"s_cbranch_vcc{'z' if i < AP else 'nz'} {L}")
                for x in fill: a(x)
                a(f"{L}:")
                if i == AP: fill = []
            if not AP and fill and i in pos: a(fill.pop(0))
            for _ in range(3 if i >= BP else 5):
                if sv: a(sv.pop(0))
        assert not fill and not sv and not rd and not xr
    stamp(a, cfg, 9)
    late = [x for j in range(JL, 14) for x in ldw(j)]
    LP = cfg.get('p2_lp', 1)
    for b in range(4):
        if b == cfg.get('p2_lb', 9): a("s_waitcnt lgkmcnt(0)\ns_barrier")
        def lw():
            for _ in range(LP):
                if late and (b >= cfg.get('p2_lb', 9) or len(late) > 2): a(late.pop(0))
        c = AC + 16 * b; km = v(K0 + 4 * b, 2); kk = v(K0 + 4 * b + 2, 2); t = EP + 8 * (b & 1); o = EP + 16 + 4 * b
        lw()
        P = range(4)
        for p in range(8): a(f"v_pk_fma_f32 {v(c+2*p,2)}, {v(CS+2*p,2)}, {km}, {v(c+2*p,2)} op_sel_hi:[1,0,1] neg_lo:[0,1,0] neg_hi:[0,1,0]")
        for p in P: a(f"v_pk_mul_f32 {v(t+2*p,2)}, {v(c+2*p,2)}, {v(c+2*p,2)}")
        lw()
        for p in P: a(f"v_pk_fma_f32 {v(t+2*p,2)}, {v(t+2*p,2)}, {kk}, {kk} op_sel:[0,1,0] op_sel_hi:[1,1,0]")
        for p in P: a(f"v_pk_mul_f32 {v(t+2*p,2)}, {v(t+2*p,2)}, {v(c+2*p,2)}")
        lw()
        for p in P: a(f"v_exp_f32 v{t+2*p}, v{t+2*p}\nv_exp_f32 v{t+2*p+1}, v{t+2*p+1}\nv_pk_mul_f32 {v(c+2*p,2)}, {v(c+2*p,2)}, {v(c+8+2*p,2)}")
        for p in P: a(f"v_pk_fma_f32 {v(t+2*p,2)}, {v(t+2*p,2)}, {km}, {km} op_sel:[0,1,1] op_sel_hi:[1,1,1]")
        for p in range(8): a(f"v_rcp_f32 v{t+p}, v{t+p}")
        lw()
        for p in P: a(f"v_pk_mul_f32 {v(c+2*p,2)}, {v(c+2*p,2)}, {v(t+2*p,2)}")
        for p in P: a(f"v_cvt_pk_bf16_f32 v{o+p}, v{c+2*p}, v{c+2*p+1}")
        a(f"buffer_store_dwordx4 {v(o,4)}, v{253+(b&1)}, {s(SO,4)}, s{80+b} offen {ST}")
    stamp(a, cfg, 10)
    K = a.label('noarr')
    a(f"s_waitcnt vmcnt(0) lgkmcnt(0)\ns_barrier\ns_cmp_lg_u32 s88, 0\ns_cbranch_scc1 {K}")
    flag_set(a, cfg, 8, 's79')
    a(f"{K}:")
    for x in late: a(x)

P3_LDS = 163840
P3_VGPR = 216
SLOT = [('H', 3), ('G', 4), ('G', 5), ('H', 2), ('G', 0), ('G', 1), ('H', 0), ('G', 2), ('G', 3), ('H', 1)]
def slot(j, alt=0):
    k, i = SLOT[j + 1 if alt else max(j - 3, 0) % 10]
    if j < 2 and not alt: k, i = 'H', j + 1
    return (0, i * 8192) if k == 'G' else (1, i * 16384)
def ldw(j, alt=0):
    k, o = slot(j, alt)
    return [f"s_add_u32 m0, {('s31', 's3')[k]}, {o}\ns_nop 0\nbuffer_load_dwordx4 v248, s[52:55], s30 offen lds",
            f"buffer_load_dwordx4 v249, s[52:55], s30 offen offset:1024 lds\ns_add_u32 s30, s30, 32768"]
def dtmap(cfg, r):
    d = cfg.get('dtx', 8)
    if d == 8: return f"s_lshr_b32 s98, s{WD}, 7\ns_sub_u32 {r}, {r}, s98\ns_add_u32 {r}, {r}, 4\ns_and_b32 {r}, {r}, 7"
    if d == 9: return f"s_add_u32 {r}, {r}, s2\ns_and_b32 {r}, {r}, 7"
    return f"s_xor_b32 {r}, {r}, {d}" if d else ''
def p3_pre(a, cfg):
    a(f"""v_lshrrev_b32 v3, 3, v2          ; row
    v_bfe_u32 v248, v2, 1, 2
    v_lshrrev_b32 v249, 4, v2
    v_xor_b32 v248, v248, v249
    v_lshlrev_b32 v248, 5, v248
    v_and_b32 v249, 1, v2
    v_lshl_add_u32 v248, v249, 4, v248
    v_lshl_add_u32 v248, v3, 10, v248
    v_add_u32 v249, 7168, v248
    s_mul_i32 s30, s67, {14*32768}
    s_lshl_b32 s3, s66, 14
    s_add_u32 s30, s30, s3
    s_lshr_b32 s3, s2, 5
    {dtmap(cfg, 's3')}
    s_lshl_b32 s3, s3, 7
    s_add_u32 s30, s30, s3
    s_lshl_b32 s3, s88, 11
    s_lshr_b32 s31, s88, 2
    s_mul_i32 s31, s31, {49152-8192}
    s_add_u32 s31, s31, s3
    s_add_u32 s3, s3, {P2_H}""")
AA = 4
def p3_addr(a, AA=4, T=12):
    a(f"""v_lshrrev_b32 v3, 2, v2          ; row = 4g+r
    v_bfe_u32 v{T}, v2, 3, 2
    s_and_b32 s76, s88, 2            ; 2*dp
    v_xor_b32 v{T}, s76, v{T}
    v_lshlrev_b32 v{T}, 5, v{T}
    v_lshl_add_u32 v{T}, v3, 7, v{T}
    v_and_b32 v3, 3, v2
    v_lshl_add_u32 v{T}, v3, 3, v{T}
    s_and_b32 s76, s31, 0xfffff000
    v_add_u32 v{AA}, s76, v{T}
    s_and_b32 s76, s3, 0xfffff000
    v_add_u32 v{AA+4}, s76, v{T}""")
    for x in range(1, 4): a(f"v_xor_b32 v{AA+x}, {32*x}, v{AA}\nv_xor_b32 v{AA+4+x}, {32*x}, v{AA+4}")
def p3_fa(j): return (216, 232, 200, 56)[j] if j < 4 else 72 + 16 * (j & 1)
def p3_reads(j, AA=4, alt=0):
    k, o = slot(j, alt); f = p3_fa(j); r = []
    for x in range(4):
        r += [f"ds_read_b64_tr_b16 {v(f+4*x,2)}, v{AA+4*k+x} offset:{o}", f"ds_read_b64_tr_b16 {v(f+4*x+2,2)}, v{AA+4*k+x} offset:{o+2048}"]
    return r

def p3_body(a, cfg):
    SG, SH, SO = 36, 40, 44
    VL = 14
    FA, AC, GF = 56, 24, 104
    a(f"""s_and_b32 s56, s2, 7
    s_and_b32 s58, s56, 3
    s_lshl_b32 s58, s58, 1
    s_lshr_b32 s56, s56, 2
    s_add_u32 s58, s58, s56
    s_lshl_b32 s58, s58, 2
    s_and_b32 s59, s57, 3
    s_add_u32 s58, s58, s59
    s_lshr_b32 s59, s57, 2           ; d tile (64)
    {dtmap(cfg, 's59')}
    s_and_b32 s61, s60, 1            ; th
    s_lshr_b32 s62, s60, 1           ; kq
    s_lshl_b32 s65, s58, 2
    s_lshl_b32 s66, s61, 1
    s_add_u32 s65, s65, s66
    s_lshr_b32 s66, s62, 1
    s_add_u32 s65, s65, s66
    s_xor_b32 s66, s65, 1
    s_mul_i32 s67, s62, 14
    s_mul_i32 s68, s65, 56
    s_mul_i32 s69, s66, 56
    s_add_u32 s68, s68, s67
    s_add_u32 s69, s69, s67
    s_lshl_b32 s68, s68, 10
    s_lshl_b32 s69, s69, 10
    s_and_b32 s70, s62, 1            ; dp""")
    srd(a, SG, WS, 23 << 20, add=WS_G)
    g_off(a, cfg, 's62', 's65')
    def ldg(j):
        r = [f"buffer_load_dwordx4 {v(GF+8*(j%12)+4*b,4)}, v{253+b}, {s(SG,4)}, s{68+b} offen offset:{1024*(j&3)} {LD}" for b in range(2)]
        if j & 3 == 3: r[1] += "\ns_add_u32 s68, s68, 4096\ns_add_u32 s69, s69, 4096"
        return r
    srd(a, SH, WS, 2 << 20, add=WS_HT); srd(a, SO, OUT, 2 << 20)
    a(f"""v_lshrrev_b32 v3, 1, v2
    s_and_b32 s71, s65, 7
    v_xor_b32 v12, s71, v3
    v_and_b32 v12, 7, v12
    v_lshlrev_b32 v12, 5, v12
    v_lshl_add_u32 v12, v3, 8, v12
    v_and_b32 v3, 1, v2
    v_lshl_add_u32 v20, v3, 4, v12
    s_lshr_b32 s71, s65, 3
    s_lshl_b32 s71, s71, 17
    s_lshl_b32 s72, s59, 1
    s_add_u32 s72, s72, s70          ; d/32
    s_lshl_b32 s73, s72, 13
    s_add_u32 s71, s71, s73
    s_lshl_b32 s73, s60, 10
    v_lshl_add_u32 v21, v2, 3, s73
    s_lshl_b32 s74, s60, 11
    s_add_u32 s74, s74, 32768
    v_add_u32 v22, s74, v{VL}
    v_and_b32 v3, 15, v2
    v_lshlrev_b32 v3, 10, v3
    v_bfe_u32 v12, v2, 4, 1
    v_lshl_add_u32 v3, v12, 5, v3
    v_lshrrev_b32 v12, 5, v2
    v_lshl_add_u32 v23, v12, 4, v3
    s_lshl_b32 s75, s65, 14
    s_lshl_b32 s72, s72, 6
    s_add_u32 s75, s75, s72""")
    reads = p3_reads
    def mfmas(j):
        f = p3_fa(j)
        return [f"v_mfma_f32_16x16x32_bf16 {v(AC+16*b+4*x,4)}, {v(f+4*x,4)}, {v(GF+8*(j%12)+4*b,4)}, {v(AC+16*b+4*x,4) if j else 0}"
                for x in range(4) for b in range(2)]
    K = a.label('nopoll')
    a(f"s_cmp_lg_u32 s88, 0\ns_cbranch_scc1 {K}\ns_lshr_b32 s76, s58, 1\ns_lshl_b32 s76, s76, 4")
    poll(a, cfg, 8, one='s76')
    a(f"{K}:\ns_barrier")
    stamp(a, cfg, 11)
    ops = []
    def issue(name, l):
        ops.extend([name] * len(l)); return l
    def need(*names):
        last = max([i for i, o in enumerate(ops) if o in names] + [-1])
        return len(ops) - 1 - last
    D = cfg.get('p3d', 4)
    for j in range(D):
        for x in issue(f'g{j}', ldg(j)): a(x)
    for j in range(14):
        if j < 13:
            a(f"s_waitcnt vmcnt({need(f'g{j}')}) lgkmcnt(0)")
            if j == 0: stamp(a, cfg, 12)
            ex = issue(f'g{j+D}', ldg(j+D)) if j + D < 14 else []
            if j == 7:
                a("s_barrier")
                ex += issue('h', [f"s_mov_b32 m0, s73\ns_nop 0\nbuffer_load_dwordx4 v20, {s(SH,4)}, s71 offen {LD} lds"])
            weave(a, mfmas(j), ex + (reads(j + 1) if j >= 3 else []), per=2)
        else:
            a(f"s_waitcnt vmcnt(0) lgkmcnt(0)")
            m = mfmas(j)
            m = [m[i] for i in (5, 7, 1, 3, 4, 6, 0, 2)]
            fill = [f"ds_read_b64_tr_b16 v[{FA}:{FA+1}], v21", f"ds_read_b64_tr_b16 v[{FA+2}:{FA+3}], v21 offset:512"]
            for i in (1, 2, 3):
                fill.append(f"s_xor_b32 s76, s60, {2*i}\ns_lshl_b32 s76, s76, 11\ns_add_u32 s76, s76, {49152*(i-1)+32768}\nv_add_u32 v{AA+i}, s76, v{VL}")
            weave(a, m, fill)
    stamp(a, cfg, 13)
    a("s_nop 1")
    for i in (3, 2, 1):
        if i == 1: a("s_nop 3")
        a(f"ds_write_b128 v{AA+i}, {v(AC+8*i,4)}\nds_write_b128 v{AA+i}, {v(AC+8*i+4,4)} offset:1024")
    a("s_mov_b32 s70, 0xffff0000\nv_add_u32 v12, 98304, v22\ns_waitcnt lgkmcnt(6)")
    for i in range(4):
        a(f"v_lshlrev_b32 v{FA+8+2*i}, 16, v{FA+i}\nv_and_b32 v{FA+9+2*i}, s70, v{FA+i}")
    a("s_waitcnt lgkmcnt(0)\ns_barrier")
    for i in range(6): a(f"ds_read_b128 {v(GF+4*i,4)}, v{22 if i < 4 else 12} offset:{1024*(i&1) + 49152*((i>>1)&1)}")
    for i in range(3):
        a(f"s_waitcnt lgkmcnt({4-2*i})")
        for p in range(4): a(f"v_pk_add_f32 {v(AC+2*p,2)}, {v(AC+2*p,2)}, {v(GF+8*i+2*p,2)}")
    for p in range(4): a(f"v_cvt_pk_bf16_f32 v{FA+p}, v{AC+2*p}, v{AC+2*p+1}")
    for p in range(4):
        a(f"v_lshlrev_b32 v{AC+2*p}, 16, v{FA+p}\nv_and_b32 v{AC+2*p+1}, s70, v{FA+p}")
    for p in range(4): a(f"v_pk_add_f32 {v(AC+2*p,2)}, {v(AC+2*p,2)}, {v(FA+8+2*p,2)}")
    for p in range(4): a(f"v_cvt_pk_bf16_f32 v{FA+p}, v{AC+2*p}, v{AC+2*p+1}")
    a(f"""s_nop 1
    v_permlane16_swap_b32 v{FA}, v{FA+2}
    v_permlane16_swap_b32 v{FA+1}, v{FA+3}
    buffer_store_dwordx4 {v(FA,4)}, v23, {s(SO,4)}, s75 offen {cfg.get('ost','')}""")

def spare_body(a, cfg):
    K = a.label('done'); CSJ = a.label('csj')
    a(f"""s_cmp_ge_u32 s57, 30
    s_cbranch_scc1 {CSJ}
    s_and_b32 s61, s2, 3
    s_lshl_b32 s61, s61, 2
    s_bfe_u32 s62, s2, 0x10002
    s_lshl_b32 s62, s62, 1
    s_add_u32 s61, s61, s62
    s_add_u32 s61, s61, s57
    s_sub_u32 s61, s61, 28           ; tb
    s_lshl_b32 s62, s61, 17
    s_add_u32 s62, s62, {WS_HT}""")
    srd(a, 32, WS, 131072, add='s62')
    for st in range(16):
        a(f"s_add_u32 m0, s63, {st*8192}\ns_mov_b32 s64, {st*8192}\nbuffer_load_dwordx4 v12, s[32:35], s64 offen {LD} lds")
    a(f"""s_xor_b32 s62, s68, s88
    s_lshl_b32 s62, s62, 5
    v_xor_b32 v4, s62, v4
    v_subrev_u32 v4, {P2_H}, v4
    v_add_u32 v5, 0x10000, v4
    v_mov_b32 v16, 0
    v_mov_b32 v17, 0
    v_mov_b32 v20, 0x3f803f80
    s_lshl_b32 s62, s61, 9
    s_lshl_b32 s64, s88, 6
    s_add_u32 s62, s62, s64
    s_add_u32 s62, s62, 16384
    v_lshlrev_b32 v7, 2, v2
    v_and_b32 v8, 0x30, v2
    v_lshl_add_u32 v7, v8, 12, v7""")
    for h in range(2):
        a(f"s_waitcnt vmcnt({8-8*h})\ns_barrier")
        for st in range(8):
            a(f"ds_read_b64_tr_b16 {v(40+4*st,2)}, v{4+h} offset:{st*8192}\nds_read_b64_tr_b16 {v(42+4*st,2)}, v{4+h} offset:{st*8192+4096}")
        for r in range(32):
            if r % 8 == 0: a(f"s_waitcnt lgkmcnt({12-r//2})")
            a(f"v_dot2c_f32_bf16 v16, v{40+r}, v20\nv_dot2c_f32_bf16 v17, v{40+r}, v{40+r}")
    a("s_nop 2")
    for sw in (16, 32):
        a(f"""v_mov_b32 v18, v16
        v_mov_b32 v19, v17
        s_nop 1
        v_permlane{sw}_swap_b32 v16, v18
        v_permlane{sw}_swap_b32 v17, v19
        v_add_f32 v16, v16, v18
        v_add_f32 v17, v17, v19""")
    bf16_round_stats(a, 16, 17, 18, 19, 20, 512)
    a(f"""buffer_store_dword v18, v7, s[48:51], s62 offen {ST}
    s_add_u32 s72, s61, 32
    s_waitcnt vmcnt(0)
    s_barrier
    s_cmp_lg_u32 s88, 0
    s_cbranch_scc1 {K}""")
    flag_set(a, cfg, 9, 's72')
    a(f"""s_branch {K}
    {CSJ}:
    s_and_b32 s61, s2, 3
    s_lshl_b32 s61, s61, 1
    s_add_u32 s61, s61, s57
    s_sub_u32 s61, s61, 30
    s_cmp_ge_u32 s61, 7
    s_cbranch_scc1 {K}
    s_bfe_u32 s72, s2, 0x10002
    s_mul_i32 s72, s72, 7
    s_add_u32 s72, s72, s61          ; ft
    s_lshl_b32 s61, s72, 8
    s_mul_i32 s62, s88, {4*3584}
    s_add_u32 s61, s61, s62
    v_lshrrev_b32 v3, 4, v2
    v_mul_u32_u24 v3, 3584, v3
    v_and_b32 v7, 15, v2
    v_lshl_add_u32 v3, v7, 4, v3""")
    order = list(range(NS, 16)) + list(range(NS))
    for j in order:
        a(f"s_add_u32 s62, s61, {j*32*3584}\nbuffer_load_dwordx4 {v(40+8*j,4)}, v3, s[36:39], s62 offen\nbuffer_load_dwordx4 {v(44+8*j,4)}, v3, s[40:43], s62 offen")
    a("""v_mov_b32 v9, 0x3f80
    v_and_b32 v8, 1, v2
    v_lshlrev_b32 v8, 4, v8
    v_lshlrev_b32 v9, v8, v9
    v_bfe_u32 v8, v2, 1, 2""")
    for j in range(4):
        a(f"v_cmp_eq_u32 vcc, {j}, v8\ns_nop 1\nv_cndmask_b32 v{16+j}, 0, v9, vcc")
    a(f"""v_lshlrev_b32 v7, 5, v7
    v_and_b32 v8, 16, v2
    v_add3_u32 v7, v7, v8, s63""")
    for i, j in enumerate(order):
        a(f"s_waitcnt vmcnt({30-2*i})")
        for m in range(2): a(f"v_mfma_f32_16x16x32_bf16 {v(20+4*m,4)}, v[16:19], {v(40+8*j+4*m,4)}, {v(20+4*m,4) if i else 0}")
    a(f"""s_nop 7
    ds_write_b128 v7, v[20:23]
    ds_write_b128 v7, v[24:27] offset:512
    s_waitcnt lgkmcnt(0)
    s_barrier""")
    for w in range(8): a(f"ds_read_b128 {v(40+4*w,4)}, v14 offset:{1024*w}")
    a(f"""v_lshrrev_b32 v7, 5, v2
    v_mul_u32_u24 v7, {1792*4-512}, v7
    v_add_u32 v7, v7, v14
    s_lshl_b32 s62, s72, 9
    s_waitcnt lgkmcnt(0)
    s_barrier
    s_cmp_lg_u32 s88, 0
    s_cbranch_scc1 {K}""")
    for w in range(1, 8): a(f"v_pk_add_f32 v[40:41], v[40:41], {v(40+4*w,2)}\nv_pk_add_f32 v[42:43], v[42:43], {v(42+4*w,2)}")
    a(f"buffer_store_dwordx4 v[40:43], v7, s[48:51], s62 offen {ST}\ns_waitcnt vmcnt(0)")
    flag_set(a, cfg, 9, 's72')
    a(f"{K}:")
    a("s_sub_u32 s30, s30, 65536")
    for j in range(4):
        for x in ldw(j, 1): a(x)
    p3_addr(a)
    a("s_waitcnt vmcnt(0)\ns_barrier")
    for j in range(4):
        for x in p3_reads(j, 4, 1): a(x)
    a("s_waitcnt lgkmcnt(0)\ns_barrier")
    for j in range(4, 14):
        for x in ldw(j): a(x)
    a("s_waitcnt vmcnt(0)")
```

```python
import sys, os
sys.path.insert(0, os.path.dirname(os.path.abspath(__file__)))
from mk2 import *
NAME = 'sequential_preLN__ssm_conv_h3__geglu_ffn__prompt_kernel'
def build(cfg):
    cfg.setdefault('S', 256); cfg.setdefault('R', 8); cfg.setdefault('LS', 128)
    a = Asm()
    a('.amdgcn_target "amdgcn-amd-amdhsa--gfx950"\n.text')
    kernel_head(a, NAME)
    a("s_cmp_ge_u32 s2, 256\ns_cbranch_scc1 L_end")
    load_args(a)
    if cfg.get('ts'): a("v_mov_b32 v255, 0")
    a(f"""v_lshrrev_b32 v1, 6, v0
    s_getpc_b64 s[44:45]
    L_pc:
    v_readfirstlane_b32 s88, v1
    s_mov_b32 s89, 0x40000
    s_cmp_ge_u32 s88, 4
    s_cbranch_scc1 L_nopf
    s_mov_b32 s46, L_code_end-L_pc
    s_mov_b32 s47, 0x00020000
    v_lshlrev_b32 v1, 7, v0
    {'' if cfg.get('nopfc') else 'buffer_load_dword v252, v1, s[44:47], 0 offen'}
    L_nopf:""")
    stamp(a, cfg, 0)
    a("s_waitcnt lgkmcnt(0)")
    stamp(a, cfg, 5)
    p0_common(a, cfg)
    srd(a, SY, WS, cfg['LS'] * 256 + 2048, add=WS_SY)
    a(f"s_load_dword {TAG}, {s(SY,2)}, 48")
    a("s_cmp_lt_u32 s88, 4\ns_cbranch_scc1 L_conv")
    help_waves(a, cfg, p2_wpre)
    a("s_branch L_p2\nL_conv:")
    conv_waves(a, cfg)
    a("L_p2:")
    tail = p2_body(a, cfg, 'L_spare')
    a("L_p3:")
    p3_body(a, cfg, tail)
    if cfg.get('hold') == 14: stamp(a, cfg, 14)
    if cfg.get('ts'):
        stamp(a, cfg, 14); a("s_waitcnt vmcnt(0)"); stamp(a, cfg, 15); stamp_flush(a, cfg, 0)
        if cfg.get('dbg'):
            srd(a, 92, DBG, 64)
            a(f"""v_readlane_b32 s96, v255, 0
            s_lshl_b32 s97, s2, 12
            v_subrev_u32 v253, 256, v0
            v_lshl_add_u32 v253, v253, 2, s97
            v_subrev_u32 v255, s96, v255
            buffer_store_dword v255, v253, s[92:95], 0 offen""")
    a("L_end:\ns_endpgm\nL_spare:")
    spare_body(a, cfg)
    a("s_branch L_p3\nL_code_end:")
    head = ("; H3 SSM-conv block + GeGLU FFN in one persistent launch (prep / long conv / gate+up / down)\n"
            "; @launch grid=(256,1,1) block=(512,1,1) lds=163840\n")
    import re
    t = a.text()
    def nt(pat):
        nonlocal t
        t, n = re.subn(r'(buffer_load_dwordx4 ' + pat + r'[^\n]*?) lds', r'\1 nt lds', t); print('nt', n)
    if cfg.get('nt0'): nt(r'v5, s\[(?:36:39|40:43|32:35)\], s54')
    if cfg.get('ntw'): nt(r'v13, ')
    if cfg.get('ntd'): nt(r'v24[89], ')
    return head + t + '.section .rodata,"a"\n' + kernel_desc(NAME, 256, 256)
if __name__ == '__main__':
    cfg = {}
    for x in sys.argv[2:]:
        k, val = x.split('=')
        cfg[k] = int(val) if val.lstrip('-').isdigit() else val
    open(sys.argv[1], 'w').write(build(cfg))
```

```python
from asm import *
from p01 import *
NS = 6
P2_G, P2_U, P2_H = 0, NS * 8192, 2 * NS * 8192
P2_ST = P2_H + 2 * 8192
PB = P2_H
KW = 8448
L_U = PB + 4 * KW
L_CSR = L_U + 9216
L_CNT = 3 * NS * 8192
WS_SY = 7 << 20
SY = 84
LD = "sc1"

TAG = 's100'
PI = 's101'
def arrive_pre(a, cfg, word, line):
    LS = cfg['LS']
    a(f"""s_mul_i32 s90, {line}, {LS}
    s_add_u32 s90, s90, {4*word}
    s_lshl_b32 s91, {line}, 2
    s_add_u32 s91, s91, {256*LS + 256*word}
    v_mov_b32 v250, -1
    v_writelane_b32 v250, s90, 0
    {'v_writelane_b32 v250, s91, 1' if cfg.get('cmp', 3) >> (word//4) & 1 else ''}
    s_and_b32 s90, s2, 7
    s_mul_i32 s90, s90, {32*LS}
    v_and_b32 v243, 31, v0
    v_mul_u32_u24 v243, {LS}, v243
    v_add_u32 v243, s90, v243""")
def arrive(a, cfg):
    a(f"v_mov_b32 v251, {TAG}\nbuffer_store_dword v251, v250, {s(SY,4)}, 0 offen sc1")

def spin(a, ld, ck, first=True):
    L = a.label('poll'); E = a.label('pollx'); F = a.label('polly')
    a(f"""{'' if first else 's_branch ' + F}
    {L}:
    {ld}
    s_sub_u32 s89, s89, 1
    s_cbranch_scc1 {E}
    {F}:
    s_waitcnt vmcnt(0)
    {ck}
    s_cbranch_vccnz {L}
    {E}:
    s_max_i32 s89, s89, 0""")
def poll(a, cfg, word, one=None):
    if one:
        a(f"s_mul_i32 s90, {one}, {cfg['LS']}\nv_and_b32 v250, 15, v0\nv_min_u32 v250, 13, v250\nv_mul_u32_u24 v250, {cfg['LS']}, v250")
        spin(a, f"buffer_load_dword v251, v250, {s(SY,4)}, s90 offen offset:{4*word} sc1", f"v_cmp_ne_u32 vcc, {TAG}, v251")
    else:
        spin(a, f"buffer_load_dword v251, v243, {s(SY,4)}, 0 offen offset:{4*word} sc1", f"v_cmp_ne_u32 vcc, {TAG}, v251")
def poll_all(a, cfg, word, vl):
    a(f"s_mov_b32 s91, {256*cfg['LS'] + 256*word}")
    ck = "\n".join(f"v_xor_b32 v{244+i}, {TAG}, v{244+i}" for i in range(4))
    ck += "\nv_or_b32 v244, v244, v245\nv_or3_b32 v244, v244, v246, v247\nv_cmp_ne_u32 vcc, 0, v244"
    if cfg.get('cmp', 3) >> (word//4) & 1:
        spin(a, f"buffer_load_dwordx4 v[244:247], v{vl}, {s(SY,4)}, s91 offen sc1", ck)
    else:
        a(f"v_mul_u32_u24 v243, {cfg['LS']//4}, v{vl}")
        spin(a, "\n".join(f"buffer_load_dword v{244+i}, v243, {s(SY,4)}, 0 offen offset:{4*word+i*cfg['LS']} sc1" for i in range(4)), ck)

def flag_set(a, cfg, word, line_sgpr):
    a(f"""v_mov_b32 v251, {TAG}
    s_mul_i32 s90, {line_sgpr}, {cfg['LS']}
    s_mov_b64 exec, 1
    buffer_store_dword v251, off, {s(SY,4)}, s90 offset:{4*word} sc1
    s_mov_b64 exec, -1""")

def last_wave(a, slot, skip, n=4):
    a(f"""v_mov_b32 v244, {L_CNT + 4*slot}
    v_mov_b32 v251, 1
    s_mov_b64 exec, 1
    s_waitcnt vmcnt(0)
    ds_add_rtn_u32 v251, v244, v251
    s_mov_b64 exec, -1
    s_waitcnt lgkmcnt(0)
    v_readfirstlane_b32 s90, v251
    s_cmp_lg_u32 s90, {n-1}
    s_cbranch_scc1 {skip}""")

L_K, L_V, L_X = 0, 9216, 17408
SW = 48
def p0_common(a, cfg):
    srd(a, 32, Q, 2 << 20); srd(a, 36, K, 2 << 20); srd(a, 40, V, 2 << 20)
    a(f"""s_and_b32 s52, s2, 7
    s_lshr_b32 s54, s2, 6
    s_lshl_b32 s52, s52, 2
    s_add_u32 s52, s52, s54          ; rb
    s_bfe_u32 s53, s2, 0x30003
    v_and_b32 v2, 63, v0
    v_lshrrev_b32 v3, 3, v0          ; row
    v_and_b32 v1, 7, v0
    v_xor_b32 v5, s88, v1
    v_lshlrev_b32 v5, 4, v5
    v_lshl_add_u32 v5, v3, 10, v5
    s_lshl_b32 s54, s52, 16
    s_lshl_b32 s55, s53, 7
    s_add_u32 s54, s54, s55
    s_lshl_b32 s55, s88, 10
    s_add_u32 m0, s55, {L_K + 1024}
    v_lshlrev_b32 v4, 4, v2
    buffer_load_dwordx4 v5, s[36:39], s54 offen lds
    s_add_u32 m0, s55, {L_V}
    v_bfe_u32 v7, v0, 3, 5
    buffer_load_dwordx4 v5, s[40:43], s54 offen lds
    s_add_u32 m0, s55, {L_X}
    s_lshl_b32 s56, s53, 5
    buffer_load_dwordx4 v5, s[32:35], s54 offen lds""")
    srd(a, SW, WS, 5 << 20)
    a(f"""v_add_u32 v8, s56, v7            ; pair p
    s_lshl_b32 s56, s52, 3
    v_add_u32 v9, s56, v1            ; G
    v_lshlrev_b32 v10, 2, v1
    v_xor_b32 v10, v10, v7
    v_lshlrev_b32 v10, 2, v10
    v_lshl_add_u32 v10, v1, 10, v10
    s_lshl_b32 s74, s53, 5
    s_add_u32 s74, s74, s52
    s_and_b32 {PI}, s2, 7
    s_lshl_b32 {PI}, {PI}, 5
    s_lshr_b32 s57, s2, 3
    s_add_u32 {PI}, {PI}, s57
    s_movk_i32 s57, 0x1000
    s_mov_b32 s59, 0xffff0000""")

def warm_entry(a, tag, W):
    a(f"s_mov_b64 exec, 0\ns_and_b32 s90, s88, {W-1}")
    for w in range(W - 1): a(f"s_cmp_eq_u32 s90, {w}\ns_cbranch_scc1 L_{tag}_{w}")
    a(f"s_branch L_{tag}_{W-1}\nL_{tag}_ret:\ns_mov_b64 exec, -1")
def warm_hops(a, tag, W, start, every):
    idx = [i for i in range(start, len(a.lines)) if a.lines[i].strip().startswith('v_mfma')][::every]
    for k in reversed(range(len(idx))):
        t = f"L_{tag}_{k+W}" if k + W < len(idx) else f"L_{tag}_ret"
        a.lines[idx[k]+1:idx[k]+1] = [f"L_{tag}_{k}:", f"    s_cbranch_execz {t}"]
def sync_a(a, cfg, warm=0):
    K2 = a.label('nopoll')
    arrive_pre(a, cfg, 0, 's74')
    if cfg.get('ts'): a("s_waitcnt vmcnt(0)")
    stamp(a, cfg, 2)
    last_wave(a, 0, K2, 8)
    arrive(a, cfg)
    poll(a, cfg, 0)
    a(f"s_lshl_b32 s90, {PI}, 13")
    for ch in range(2):
        a(f"s_mov_b32 m0, {L_U + 4608*ch + 512}\ns_nop 0")
        for j in range(4):
            a(f"buffer_load_dwordx4 v4, {s(SW,4)}, s90 offen offset:{1024*j} {LD} lds")
        if ch == 0: a("s_add_u32 s90, s90, 4096")
    poll_all(a, cfg, 0, 4)
    if warm:
        a(f"s_waitcnt vmcnt(0)\ns_branch L_wc_go\n{K2}:"); warm_entry(a, 'wc', 4); a("L_wc_go:")
    else: a(f"s_waitcnt vmcnt(0)\n{K2}:")

def conv_waves(a, cfg):
    SKR = 44
    A0, B0, C0 = 24, 152, 216
    SA, XR, OX = B0, B0 + 8, B0 + 16
    a(f"""s_lshl_b32 s60, s52, 6
    s_lshl_b32 s61, s53, 3
    s_add_u32 s60, s60, s61
    v_lshrrev_b32 v6, 5, v0
    v_add_u32 v6, s60, v6
    v_and_b32 v7, 31, v0
    v_lshlrev_b32 v3, 4, v7
    v_lshl_add_u32 v3, v6, 10, v3
    buffer_load_dwordx4 {v(SA,4)}, v3, s[32:35], 0 offen
    buffer_load_dwordx4 {v(SA+4,4)}, v3, s[32:35], 0 offen offset:512
    s_lshr_b32 s72, s88, 1           ; ch
    s_and_b32 s73, s88, 1            ; half
    s_lshl_b32 s62, {PI}, 1
    s_add_u32 s62, s62, s72          ; d
    s_lshl_b32 s62, s62, 12""")
    srd(a, SKR, SSK, 4096, add='s62')
    a(f"""s_mul_i32 s54, s88, {P1_KC1}
    s_add_u32 s54, s54, {PB}
    s_lshl_b32 s62, s73, 2
    v_lshl_add_u32 v3, v2, 2, s62
    v_subrev_u32 v3, 32, v3
    s_add_u32 m0, s54, 32
    v_add_u32 v5, s62, v4""")
    for j in range(4):
        a(f"buffer_load_dwordx4 v5, {s(SKR,4)}, 0 offen offset:{1024*j} lds")
    a(f"""s_mov_b32 m0, s54
    s_mul_i32 s54, s72, {KW}
    buffer_load_dword v3, {s(SKR,4)}, 0 offen lds
    s_add_u32 s54, s54, {PB}
    v_lshlrev_b32 v21, 13, v8
    v_lshl_add_u32 v21, v9, 4, v21
    v_add_u32 v21, {WS_XT}, v21
    v_lshlrev_b32 v6, 2, v6
    v_lshl_add_u32 v6, v7, 23, v6
    v_add_u32 v6, {WS_ST}, v6
    v_add_u32 v23, {L_X}, v10
    v_mov_b32 v9, {L_CNT}
    v_mov_b32 v10, 0
    v_mov_b32 v11, 0
    ds_write_b64 v9, v[10:11]""")
    npf = 0
    if cfg.get('pf_w', 0):
        nl = cfg.get('pf_w', 0) * 21
        a(f"""s_bitcmp1_b32 s88, 0
        s_cselect_b32 s68, s{WU}, s{WG}
        s_cselect_b32 s69, s{WU+1}, s{WG+1}
        s_cmp_lt_u32 s88, 2
        s_cselect_b32 s70, {512*3584}, 0
        s_mov_b32 s71, 0x00020000
        s_mul_i32 s64, s2, {nl*128}
        v_min_u32 v7, {nl-1}, v2
        v_lshlrev_b32 v7, 7, v7
        buffer_load_dword v252, v7, s[68:71], s64 offen""")
        npf = 1
    a(f"""s_mul_i32 s53, s72, 4608
    s_add_u32 s53, s53, {L_U}
    v_lshl_add_u32 v8, v2, 3, s53
    ds_write_b64 v8, v[10:11]
    v_and_b32 v9, 15, v2             ; m / n
    v_lshrrev_b32 v10, 4, v2         ; g
    v_add_u32 v11, 1, v9
    v_and_b32 v12, 1, v11
    v_lshlrev_b32 v12, 1, v12
    v_lshrrev_b32 v11, 1, v11
    v_and_b32 v13, 1, v11
    v_mul_u32_u24 v13, {P1_KC1}, v13
    v_and_b32 v11, 14, v11
    v_lshl_add_u32 v11, v10, 4, v11
    v_lshl_add_u32 v13, v11, 2, v13
    s_lshl_b32 s62, s73, 8
    s_add_u32 s62, s62, s54
    v_add_u32 v13, s62, v13
    v_lshlrev_b32 v14, 1, v9
    v_lshlrev_b32 v15, 2, v10
    v_sub_u32 v14, v14, v15
    s_lshl_b32 s63, s73, 4
    s_sub_u32 s63, 33, s63
    v_add_u32 v14, s63, v14""")
    for rho in range(4):
        a(f"""v_subrev_u32 v15, {rho}, v14
        v_bfe_u32 v20, v15, 4, 1
        v_xor_b32 v15, v15, v20
        v_lshl_add_u32 v{16+rho}, v15, 4, s53""")
    a(f"""v_lshrrev_b32 v14, 5, v2
    v_lshlrev_b32 v14, 7, v14
    v_xor_b32 v14, v14, v4
    s_lshl_b32 s63, s88, 13
    s_add_u32 s63, s63, {PB}
    v_add_u32 v22, s63, v14""")
    stamp(a, cfg, 6)
    a(f"""s_mov_b32 s60, 0x05040100
    s_mov_b32 s61, 0x07060302
    s_waitcnt vmcnt({npf}) lgkmcnt(0)
    s_add_u32 {TAG}, {TAG}, 1
    s_barrier""")
    stamp(a, cfg, 1)
    for i in range(4): a(f"ds_read2_b32 {v(XR+2*i,2)}, v23 offset0:{64*i} offset1:{64*i+32}")
    a("v_mov_b32 v14, 0\nv_mov_b32 v15, 0\nv_mov_b32 v20, 0x3f803f80")
    for i in range(8):
        a(f"v_dot2c_f32_bf16 v14, v{SA+i}, v20\nv_dot2c_f32_bf16 v15, v{SA+i}, v{SA+i}")
    a("s_waitcnt lgkmcnt(0)")
    for c in range(2):
        for i in range(4):
            a(f"v_perm_b32 v{OX+4*c+i}, v{XR+2*i+1}, v{XR+2*i}, s{60+c}")
    a(f"""buffer_store_dwordx4 {v(OX,4)}, v21, {s(SW,4)}, 0 offen {ST}
    buffer_store_dwordx4 {v(OX+4,4)}, v21, {s(SW,4)}, s57 offen {ST}""")
    for ctl in ("quad_perm:[1,0,3,2]", "quad_perm:[2,3,0,1]", "row_half_mirror", "row_mirror"):
        a(f"""v_add_f32_dpp v14, v14, v14 {ctl} row_mask:0xf bank_mask:0xf
        v_add_f32_dpp v15, v15, v15 {ctl} row_mask:0xf bank_mask:0xf
        s_nop 0""")
    a("""v_mov_b32 v20, v14
    v_mov_b32 v23, v15
    s_nop 1
    v_permlane16_swap_b32 v14, v20
    v_permlane16_swap_b32 v15, v23
    v_add_f32 v14, v14, v20
    v_add_f32 v15, v15, v23""")
    bf16_round_stats(a, 14, 15, 23, 20, 21, 512)
    a(f"buffer_store_dword v23, v6, {s(SW,4)}, 0 offen {ST}")
    def align(p):
        for i in range(16):
            hi = A0+16*p+i+1 if i < 15 else B0+32+p
            a(f"v_alignbyte_b32 v{A0+16*p+i}, v{hi}, v{A0+16*p+i}, v12")
    for p in range(8):
        for i in range(8):
            a(f"ds_read_b64 {v(A0+16*p+2*i,2)}, v13 offset:{512*p+8*i}")
        a(f"ds_read_b32 v{B0+32+p}, v13 offset:{512*p+64}")
        if p >= 1:
            a("s_waitcnt lgkmcnt(9)"); align(p - 1)
    a("s_waitcnt lgkmcnt(0)")
    align(7)
    sync_a(a, cfg, cfg.get('wc', 0))
    a("s_barrier")
    stamp(a, cfg, 3)
    def rdB(rho, q):
        a(f"ds_read_b128 {v(B0+32*(rho&1)+4*q,4)}, v{16+rho} offset:{512*q}")
    if cfg.get('prio', 1): a("s_setprio 2")
    w0 = len(a.lines)
    for q in range(8): rdB(0, q)
    for rho in range(4):
        cnt = 0
        for q in range(8):
            nxt = min(cnt, 8) if rho < 3 else 0
            if rho == 0 or q == 0:
                a(f"s_waitcnt lgkmcnt({(7-q)+nxt if rho == 0 else 0})")
            for p in range(8 - q):
                c = v(C0+4*(p+q),4)
                a(f"v_mfma_f32_16x16x32_bf16 {c}, {v(A0+16*p+4*rho,4)}, {v(B0+32*(rho&1)+4*q,4)}, {c if rho or q else 0}")
                if rho < 3 and q >= 1 and cnt < 8 and p % 2 == 0:
                    rdB(rho + 1, cnt); cnt += 1
                if rho == 3 and p == 0 and q in (2, 3, 4, 5):
                    a(f"ds_write_b128 v22, {v(C0+4*(q-2),4)} offset:{1024*(q-2)}")
    a(f"ds_write_b128 v22, {v(C0+16,4)} offset:4096\ns_nop 1\nds_write_b128 v22, {v(C0+20,4)} offset:5120\ns_nop 1")
    a(f"ds_write_b128 v22, {v(C0+24,4)} offset:6144\ns_nop 1\nds_write_b128 v22, {v(C0+28,4)} offset:7168\ns_waitcnt lgkmcnt(0)")
    if cfg.get('wc', 0): warm_hops(a, 'wc', 4, w0, cfg.get('wc', 0))
    stamp(a, cfg, 4)
    if cfg.get('prio', 1): a("s_setprio 0")
    a("s_barrier")

def help_waves(a, cfg, wpre):
    SD, SH = 32, 36
    KR, VR, WR = 12, 24, 32
    WP, KP, UP, TP, OU = 48, 56, 78, 94, 96
    H = a.label('nohalo')
    srd(a, 44, SHK, 4096)
    a(f"""v_and_b32 v0, 0xff, v0
    v_lshlrev_b32 v3, 4, v8
    buffer_load_dwordx4 {v(WR,4)}, v3, s[44:47], 0 offen
    s_cmp_lg_u32 s88, 7
    s_cbranch_scc1 {H}
    s_mov_b32 m0, {L_K}
    v_add_u32 v5, s54, v5
    v_subrev_u32 v5, 0x10000, v5
    buffer_load_dwordx4 v5, s[36:39], 0 offen lds
    {H}:
    v_add_u32 v11, 7, v1
    v_and_b32 v11, 7, v11
    v_lshlrev_b32 v11, 2, v11
    v_xor_b32 v11, v11, v7
    v_lshlrev_b32 v11, 2, v11
    v_lshl_add_u32 v11, v1, 10, v11
    v_add_u32 v3, {L_V}, v10
    v_add_u32 v10, {L_K + 1024}, v10
    v_bfe_u32 v6, v9, 4, 1
    v_xor_b32 v6, v6, v9
    v_lshlrev_b32 v6, 4, v6
    v_lshl_add_u32 v6, v8, 13, v6
    s_waitcnt vmcnt(0) lgkmcnt(0)
    s_add_u32 {TAG}, {TAG}, 1""")
    a("s_barrier")
    stamp(a, cfg, 1)
    a(f"ds_read2_b32 {v(KR,2)}, v11 offset0:128 offset1:160\nds_read2_b32 {v(KR+2,2)}, v11 offset0:192 offset1:224")
    for i in range(4):
        a(f"ds_read2_b32 {v(KR+4+2*i,2)}, v10 offset0:{64*i} offset1:{64*i+32}")
        a(f"ds_read2_b32 {v(VR+2*i,2)}, v3 offset0:{64*i} offset1:{64*i+32}")
    for j in range(4):
        for c in range(2):
            r = WR + 2 * c + (j >> 1)
            a(f"v_lshlrev_b32 v{WP+2*j+c}, 16, v{r}" if j % 2 == 0 else f"v_and_b32 v{WP+2*j+c}, s59, v{r}")
    def unpack(dst, src):
        a(f"v_lshlrev_b32 v{dst}, 16, v{src}\nv_and_b32 v{dst+1}, s59, v{src}")
    a("s_waitcnt lgkmcnt(8)")
    for j in range(3): unpack(KP + 2 * j, KR + 1 + j)
    for j in range(8):
        if j % 2 == 0: a(f"s_waitcnt lgkmcnt({6-j})")
        unpack(KP + 2 * (3 + j), KR + 4 + j)
        unpack(TP, VR + j)
        u = v(UP + 2 * j, 2)
        a(f"v_pk_mul_f32 {u}, {v(KP+2*j,2)}, {v(WP+6,2)}")
        for t in (1, 2, 3):
            a(f"v_pk_fma_f32 {u}, {v(KP+2*(j+t),2)}, {v(WP+2*(3-t),2)}, {u}")
        a(f"v_pk_mul_f32 {u}, {u}, {v(TP,2)}")
    for c in range(2):
        for i in range(4):
            a(f"v_cvt_pk_bf16_f32 v{OU+4*c+i}, v{UP+2*(7-2*i)+c}, v{UP+2*(6-2*i)+c}")
        a(f"buffer_store_dwordx4 {v(OU+4*c,4)}, v6, {s(SW,4)}, {('0', 's57')[c]} offen {ST}")
    a(f"""s_bfe_u32 s53, s88, 0x10001      ; ch
    s_and_b32 s54, s88, 1            ; half
    s_lshl_b32 s55, {PI}, 1
    s_add_u32 s55, s55, s53          ; d""")
    srd(a, SD, SSD, 1024); srd(a, SH, WS, 2 << 20, add=WS_HT)
    XR, SR, UR, T, XN, YR = 24, 32, 48, 56, 72, 88
    a(f"""s_lshl_b32 s56, s55, 12
    s_lshl_b32 s57, s54, 11
    s_add_u32 s56, s56, s57
    s_add_u32 s56, s56, {WS_XT}
    s_lshl_b32 s58, s57, 1
    s_add_u32 s58, s58, {WS_ST}
    s_lshl_b32 s59, s55, 1
    v_lshlrev_b32 v5, 5, v2
    v_bfe_u32 v6, v2, 4, 1
    v_xor_b32 v6, v6, v2
    s_mul_i32 s60, s53, 4608
    s_add_u32 s60, s60, s57
    s_add_u32 s60, s60, {L_U + 512}
    v_lshl_add_u32 v6, v6, 4, s60    ; u address""")
    sync_a(a, cfg)
    a("s_barrier")
    stamp(a, cfg, 4)
    a(f"""buffer_load_dwordx4 {v(XR,4)}, v4, {s(SW,4)}, s56 offen {LD}
    buffer_load_dwordx4 {v(SR,4)}, v5, {s(SW,4)}, s58 offen {LD}
    buffer_load_dwordx4 {v(SR+4,4)}, v5, {s(SW,4)}, s58 offen offset:16 {LD}
    buffer_load_dwordx4 {v(XR+4,4)}, v4, {s(SW,4)}, s56 offen offset:1024 {LD}
    buffer_load_dwordx4 {v(SR+8,4)}, v5, {s(SW,4)}, s58 offen offset:2048 {LD}
    buffer_load_dwordx4 {v(SR+12,4)}, v5, {s(SW,4)}, s58 offen offset:2064 {LD}
    buffer_load_ushort v23, off, {s(SD,4)}, s59
    ds_read_b128 {v(UR,4)}, v6
    ds_read_b128 {v(UR+4,4)}, v6 offset:1024""")
    wl = wpre(a); n = cfg.get('wn', 8)
    for x in wl[:n]: a(x)
    wl = wl[n:]
    a(f"""v_and_b32 v9, 1, v2
    v_bfe_u32 v10, v2, 1, 4          ; n
    v_lshlrev_b32 v10, 4, v10
    v_mul_u32_u24 v11, 640, v9
    v_xor_b32 v10, v10, v11
    v_lshrrev_b32 v11, 5, v2
    v_lshl_add_u32 v10, v11, 10, v10
    s_lshl_b32 s60, s53, 14
    s_lshl_b32 s61, s54, 12
    s_add_u32 s60, s60, s61
    s_add_u32 s60, s60, {PB}
    v_add_u32 v10, s60, v10          ; y address
    v_bfe_u32 v11, v2, 1, 3
    s_and_b32 s60, s55, 7
    v_xor_b32 v11, s60, v11
    v_lshlrev_b32 v11, 5, v11
    v_lshl_add_u32 v11, v9, 4, v11
    v_lshrrev_b32 v9, 4, v2
    v_lshl_add_u32 v11, v9, 17, v11
    s_lshl_b32 s72, s54, 20
    s_lshl_b32 s73, s55, 8
    s_add_u32 s72, s72, s73
    s_add_u32 s73, s72, 0x80000
    s_mov_b32 s59, 0xffff0000
    s_waitcnt vmcnt({n}) lgkmcnt(0)
    v_lshlrev_b32 v23, 16, v23""")
    for e in range(16):
        j = e & 7; xs = XR + (e >> 1); us = UR + 4 * (e >> 3) + 3 - (j >> 1)
        a(f"v_lshlrev_b32 v{T+e}, 16, v{xs}" if j % 2 == 0 else f"v_and_b32 v{T+e}, s59, v{xs}")
        a(f"""v_and_b32 v20, s59, v{SR+e}
        v_rcp_f32 v20, v20
        v_lshlrev_b32 v21, 16, v{SR+e}
        v_sub_f32 v21, v{T+e}, v21
        v_mul_f32 v{XN+e}, v21, v20""")
        a(f"v_and_b32 v21, s59, v{us}" if j % 2 == 0 else f"v_lshlrev_b32 v21, 16, v{us}")
        a(f"v_mul_f32 v21, v21, v23\nv_fmac_f32 v{T+e}, v{XN+e}, v21")
        if wl: a(wl.pop(0))
    for x in wl: a(x)
    stamp(a, cfg, 5)
    a("s_barrier")
    for sp in range(2):
        for w in range(2):
            for gg in range(2):
                a(f"ds_read_b128 {v(YR+16*sp+8*w+4*gg,4)}, v10 offset:{8192*w+2048*sp+256*gg}")
    for sp in range(2):
        a(f"s_waitcnt lgkmcnt({4-4*sp})")
        y = YR + 16 * sp
        for p in range(4): a(f"v_pk_add_f32 {v(y+2*p,2)}, {v(y+2*p,2)}, {v(y+8+2*p,2)}")
        for p in range(4): a(f"v_pk_fma_f32 {v(y+2*p,2)}, {v(y+2*p,2)}, {v(XN+8*sp+2*p,2)}, {v(T+8*sp+2*p,2)}")
        for p in range(4): a(f"v_cvt_pk_bf16_f32 v{XR+4*sp+p}, v{y+2*p}, v{y+2*p+1}")
        a(f"buffer_store_dwordx4 {v(XR+4*sp,4)}, v11, {s(SH,4)}, s{72+sp} offen {ST}")
    a("v_or_b32 v0, 0x100, v0")
```

```python
from asm import *
from p01 import *
from mk1 import *
P2_LDS = P2_ST + 1024
P2_VGPR = 200
import struct, os
def fl(x): return hex(struct.unpack('<I', struct.pack('<f', x))[0])

def weave(a, mf, fill, start=0, per=1):
    fill = list(fill)
    for i, m in enumerate(mf):
        a(m)
        if i >= start:
            for _ in range(per):
                if fill: a(fill.pop(0))
    for f in fill: a(f)

MAP2 = """s_bfe_u32 s59, s2, 0x20001
    s_mul_i32 s59, s59, 28
    s_add_u32 s59, s59, s57
    s_and_b32 s58, s59, 7
    s_lshr_b32 s59, s59, 3
    s_and_b32 s56, s2, 1
    s_lshl_b32 s56, s56, 3
    s_add_u32 s58, s58, s56""" if int(os.environ.get('MAP2', 0)) else ''
def p2_ids(a):
    a(f"""s_and_b32 s56, s2, 7
    s_lshr_b32 s57, s2, 3
    s_and_b32 s58, s56, 3
    s_lshl_b32 s58, s58, 2
    s_and_b32 s59, s57, 3
    s_add_u32 s58, s58, s59          ; tb
    s_lshr_b32 s56, s56, 2
    s_mul_i32 s56, s56, 7
    s_lshr_b32 s59, s57, 2
    s_add_u32 s59, s59, s56          ; ft
    {MAP2}
    v_lshrrev_b32 v3, 4, v0
    v_bfe_u32 v13, v0, 1, 3
    v_xor_b32 v13, v13, v3
    v_and_b32 v13, 7, v13
    v_lshlrev_b32 v13, 5, v13
    v_and_b32 v15, 1, v0
    v_lshl_add_u32 v13, v15, 4, v13
    v_mul_u32_u24 v3, 3584, v3
    s_lshl_b32 s62, s59, 8
    v_add3_u32 v13, v13, v3, s62""")

def p2_wpre(a):
    p2_ids(a)
    srd(a, 64, WG, 512 * 3584); srd(a, 68, WU, 512 * 3584)
    a(f"""s_cmp_lt_u32 s57, 28
    s_cselect_b32 s66, s66, 0
    s_cselect_b32 s70, s70, 0
    s_lshl_b32 s63, s88, 10
    s_mov_b32 s62, 0""")
    r = []
    for i in range(2 * NS):
        r += [f"s_add_u32 m0, s63, {P2_G + 4096*(i-1)}\ns_nop 0\nbuffer_load_dwordx4 v13, s[64:67], s62 offen lds",
              f"s_add_u32 m0, s63, {P2_U + 4096*(i-1)}\ns_nop 0\nbuffer_load_dwordx4 v13, s[68:71], s62 offen lds\ns_add_u32 s62, s62, {16*3584}"]
    return r

def g_off(a, cfg, kq, tile):
    if cfg.get('nogx'):
        a("v_mov_b32 v253, v14\nv_mov_b32 v254, v14"); return
    a(f"""s_and_b32 s98, {tile}, 1
    s_lshl1_add_u32 s98, {kq}, s98
    s_lshl_b32 s98, s98, 7
    s_add_u32 s98, s98, {(16 << 20) - 384}
    v_lshrrev_b32 v3, 3, v2
    v_cmp_eq_u32 vcc, 3, v3
    v_add_u32 v253, s98, v14
    v_xor_b32 v254, 0x80, v253
    v_cndmask_b32 v253, v14, v253, vcc
    v_cndmask_b32 v254, v14, v254, vcc""")

def p2_body(a, cfg, spare):
    SH, SG, SU, SO, SC, SD = 32, 36, 40, 44, 48, 52
    AB, AG, AU = 4, 8, 10
    VH, VW, VL = 12, 13, 14
    S0, T0 = 16, 20
    CS, FR, AC = 24, 40, 104
    EP = 168
    p2_ids(a)
    K = a.label('nopoll')
    a(f"""v_and_b32 v2, 63, v0
    s_mov_b32 s60, s88
    s_lshl_b32 s61, s58, 17
    s_add_u32 s61, s61, {WS_HT}""")
    srd(a, SH, WS, 131072, add='s61'); srd(a, SG, WG, 512 * 3584); srd(a, SU, WU, 512 * 3584)
    a(f"""v_lshlrev_b32 v{VH}, 4, v0        ; 16l + 1024w
    s_lshl_b32 s63, s60, 10
    s_mov_b32 s64, 0
    s_mov_b32 s65, {NS*32*3584}""")
    def dma(st):
        sl = st % NS
        return [f"s_add_u32 m0, s63, {P2_G + sl*8192}\ns_nop 0\nbuffer_load_dwordx4 v{VW}, {s(SG,4)}, s65 offen lds",
                f"s_add_u32 m0, s63, {P2_U + sl*8192}\ns_nop 0\nbuffer_load_dwordx4 v{VW}, {s(SU,4)}, s65 offen lds",
                f"s_add_u32 m0, s63, {P2_H + sl*8192}\ns_add_u32 s65, s65, {32*3584}\nbuffer_load_dwordx4 v{VH}, {s(SH,4)}, s64 offen {LD} lds\ns_add_u32 s64, s64, 8192"]
    srd(a, SO, WS, 23 << 20, add=WS_G); srd(a, SC, WS, 24576, add=WS_CS); srd(a, SD, WD, 1792 * 1024)
    a(f"""s_and_b32 s66, s60, 1            ; th
    s_lshr_b32 s67, s60, 1           ; fq
    v_lshrrev_b32 v3, 2, v2          ; row = 4g+r
    v_and_b32 v15, 7, v3
    v_lshlrev_b32 v15, 5, v15
    v_lshl_add_u32 v15, v3, 8, v15
    v_and_b32 v3, 3, v2
    v_lshl_add_u32 v15, v3, 3, v15   ; base
    s_lshl_b32 s68, s66, 2
    s_add_u32 s68, s68, s67          ; 4th+fq
    s_lshl_b32 s69, s68, 5
    v_xor_b32 v{AB}, s69, v15
    v_add_u32 v{AB}, {P2_H}, v{AB}
    v_xor_b32 v{AB+1}, 32, v{AB}
    v_xor_b32 v{AB+2}, 64, v{AB}
    v_xor_b32 v{AB+3}, 0x60, v{AB}
    s_lshl_b32 s69, s67, 6
    v_xor_b32 v15, s69, v15
    v_add_u32 v{AG}, {P2_G}, v15
    v_xor_b32 v{AG+1}, 32, v{AG}
    v_add_u32 v{AU}, {P2_U}, v15
    v_xor_b32 v{AU+1}, 32, v{AU}
    v_lshlrev_b32 v{VL}, 4, v2
    s_mov_b32 s70, 0xffff0000
    s_lshl_b32 s71, s59, 9
    s_lshl_b32 s72, s67, 7
    s_add_u32 s71, s71, s72
    s_add_u32 s72, s71, {1792*4}
    s_lshl_b32 s73, s57, 16
    s_lshl_b32 s74, s58, 3
    s_lshl_b32 s75, s59, 2
    s_add_u32 s75, s75, s67          ; ks""")
    for b in range(4):
        a(f"s_xor_b32 s76, s68, {b}\ns_add_u32 s76, s76, s74\ns_mul_i32 s76, s76, 56\ns_add_u32 s76, s76, s75\ns_lshl_b32 s{80+b}, s76, 10")
    a(f"""s_sub_u32 s76, s58, s59
    s_add_u32 s76, s76, 32
    s_mul_i32 s76, s76, {cfg['LS']}
    s_mul_i32 s73, s59, {cfg['LS']}
    v_and_b32 v16, 1, v2
    v_mul_lo_u32 v16, v16, s76
    v_and_b32 v17, 0x30, v2
    v_and_b32 v18, 15, v2
    s_lshl_b32 s76, s68, 4
    v_add_lshl_u32 v18, v18, s76, 2
    s_lshl_b32 s69, s58, 9
    s_add_u32 s69, s69, 16384
    s_lshl_b32 s79, s58, 4
    s_add_u32 s79, s79, s59
    s_mov_b32 s77, {fl(-2.302208198)}
    s_mov_b32 s78, {fl(-0.1029432397)}""")
    a("s_mul_i32 s99, s75, 4682\ns_lshr_b32 s99, s99, 16")
    g_off(a, cfg, 's99', 's68')
    p3_pre(a, cfg)
    p3_addr(a, EP, EP + 8)
    def reads(st):
        o = (st % NS) * 8192; f = FR + 32 * (st & 1); r = []
        order = [(f, AG), (f+16, AB), (f+4, AG+1), (f+20, AB+1), (f+8, AU), (f+24, AB+2), (f+12, AU+1), (f+28, AB+3)]
        for d, ad in order:
            r += [f"ds_read_b64_tr_b16 {v(d,2)}, v{ad} offset:{o}", f"ds_read_b64_tr_b16 {v(d+2,2)}, v{ad} offset:{o+4096}"]
        return r
    def stats(st):
        f = FR + 32 * (st & 1) + 16; r = []
        for i in range(4):
            t = T0 + 2 * (i & 1)
            r += [f"v_lshlrev_b32 v{t}, 16, v{f+i}", f"v_and_b32 v{t+1}, s70, v{f+i}",
                  f"v_add_f32 v{S0}, v{S0}, v{t}", f"v_add_f32 v{S0+1}, v{S0+1}, v{t+1}",
                  f"v_fmac_f32 v{S0+2}, v{t}, v{t}", f"v_fmac_f32 v{S0+3}, v{t+1}, v{t+1}"]
        if cfg.get('x_nostat') and st < 15: r = [''] * 24
        return r
    ORD = [(0,0),(1,0),(0,1),(1,1),(2,0),(2,1),(0,2),(1,2),(2,2),(3,0),(3,1),(3,2),(0,3),(1,3),(2,3),(3,3)]
    LG = {0: 12, 1: 10, 2: 8, 4: 6, 6: 4, 9: 2, 12: 0}
    def mfmas(st):
        f = FR + 32 * (st & 1)
        return [f"v_mfma_f32_16x16x32_bf16 {v(AC+16*b+4*x,4)}, {v(f+4*x,4)}, {v(f+16+4*b,4)}, {v(AC+16*b+4*x,4) if st else 0}"
                for x, b in ORD]
    KH = a.label('hw')
    a(f"s_add_u32 s30, s30, 65536\ns_barrier\ns_cmp_ge_u32 s88, 4\ns_cbranch_scc1 {KH}\ns_cmp_ge_u32 s57, 28\ns_cbranch_scc1 {K}")
    for j in range(2):
        for hf in range(2):
            a(f"s_add_u32 m0, s3, {slot(j)[1] + 8192*hf}\ns_add_u32 s76, s30, {(j - 2 + 28*hf)*32768 & 0xffffffff}\n"
              f"buffer_load_dwordx4 v248, s[52:55], s76 offen lds\nbuffer_load_dwordx4 v249, s[52:55], s76 offen offset:1024 lds")
    if cfg.get('w2h', 0): warm_entry(a, 'wp', 4)
    a(f"s_waitcnt vmcnt(0)\ns_branch {K}\n{KH}:")
    arrive_pre(a, cfg, 4, PI if cfg.get('bpi') else 's2')
    if cfg.get('ts'): a("s_waitcnt vmcnt(0)")
    stamp(a, cfg, 6)
    last_wave(a, 1, K)
    arrive(a, cfg)
    a(f"s_cmp_ge_u32 s57, 30\ns_cbranch_scc1 {K}")
    if not cfg.get('nogrp'): poll(a, cfg, 4)
    stamp(a, cfg, 3)
    poll_all(a, cfg, 4, VL)
    a(f"s_cmp_lg_u32 s2, 0\ns_cbranch_scc1 {K}")
    flag_set(a, cfg, 12, '0')
    a(f"{K}:\ns_barrier\ns_cmp_ge_u32 s57, 28\ns_cbranch_scc1 {spare}")
    stamp(a, cfg, 7)
    for st in range(NS):
        if st == 2:
            for x in p3_reads(0, EP) + p3_reads(1, EP): a(x)
            a("s_waitcnt lgkmcnt(0)\ns_barrier")
        a(f"s_add_u32 m0, s63, {P2_H + st*8192}\ns_nop 0\nbuffer_load_dwordx4 v{VH}, {s(SH,4)}, s64 offen {LD} lds\ns_add_u32 s64, s64, 8192")
    nops = lambda lo, hi: sum(1 if x < NS else 3 for x in range(lo, hi + 1))
    a(f"s_waitcnt vmcnt({NS-1})\ns_barrier")
    stamp(a, cfg, 8)
    for x in reads(0): a(x)
    a(f"s_waitcnt vmcnt({NS-2})\ns_barrier")
    ops = [f'd{x}' for x in range(NS)]
    def need(*names):
        last = max([i for i, o in enumerate(ops) if o in names] + [-1])
        return len(ops) - 1 - last
    BP = cfg.get('p2_bp', 4); w0 = len(a.lines)
    K0 = FR
    FS = cfg.get('p2_fs', 11)
    w2, w3 = cfg.get('w2', 2), cfg.get('w3', 10)
    WS_ = {w2: (2,), 10: (4,), 11: (5, 6), 12: (7,), 13: (8, 9), 14: (10,), 15: (11, 12)}
    WS_[w3] = (3,) + WS_.get(w3, ())
    WR = {w2 + 3: 2, 15: 3}
    JL = max(max(x) for x in WS_.values()) + 1
    fld = f"buffer_load_dword v1, v16, {s(SY,4)}, s73 offen offset:36 sc1"
    for st in range(16):
        mf = mfmas(st); rd = reads(st + 1) if st < 15 else []; fill = []; sv = []; xr = []
        nr = lambda i: i if st < 15 else 0
        if st == 15:
            if cfg.get('sp', 0): a("s_setprio 1")
            sv = [f"v_mov_b32 v{4+x}, v{EP+x}" for x in range(8)]
        for i in range(16):
            if i < BP and i in LG: a(f"s_waitcnt lgkmcnt({min(15, LG[i] + nr(i))})")
            if i == BP:
                for x in sv: a(x)
                sv = []
                a(f"s_waitcnt vmcnt({need(f'd{st+2}', 'flag', f'w{WR.get(st)}', *(('cs',) if st == 15 else ()))}) lgkmcnt({nr(BP)})\n" + ('' if st % cfg.get('x_nb', 1) else 's_barrier'))
                if st < 10:
                    for j in WS_.get(st, ()):
                        fill += ldw(j); ops += [f'w{j}'] * 2
                    if st in WR: xr = p3_reads(WR[st], EP)
                if st + NS <= 15:
                    fill += dma(st + NS); ops += [f'd{st+NS}'] * 3
                if st == FS:
                    fill += [fld]; ops.append('flag')
                if st == FS + 1:
                    L1 = a.label('csf'); L2 = a.label('csfx')
                    a(f"v_cmp_ne_u32 vcc, {TAG}, v1\ns_cbranch_vccz {L2}")
                    spin(a, fld, f"v_cmp_ne_u32 vcc, {TAG}, v1")
                    a(f"{L2}:")
                    fill += [f"buffer_load_dwordx4 {v(CS+4*x,4)}, v17, {s(SC,4)}, s{71+(x>>1)} offen offset:{64*(x&1)} {LD}\n"
                             f"v_xor_b32 v19, {64*x}, v18\nbuffer_load_dword v{T0+x}, v19, {s(SC,4)}, s69 offen {LD}" for x in range(4)]
                    ops += ['cs'] * 8
                for j in (WS_.get(st, ()) if st >= 10 else ()):
                    fill += ldw(j); ops += [f'w{j}'] * 2
                if st == 15:
                    rd = p3_reads(3)
                    for b in range(4):
                        k = K0 + 4 * b
                        sv += [f"v_and_b32 v{k+1}, s70, v{T0+b}", f"v_rcp_f32 v{k+2}, v{k+1}", f"v_lshlrev_b32 v{k}, 16, v{T0+b}",
                               f"v_mul_f32 v{k+1}, v{k+1}, v{k+1}", f"v_mul_f32 v{k+3}, v{k+2}, v{k+2}", f"v_mul_f32 v{k+3}, s78, v{k+3}",
                               f"v_mul_f32 v{k+3}, v{k+3}, v{k+2}", f"v_mul_f32 v{k+2}, s77, v{k+2}"]
            a(mf[i])
            if rd: a(rd.pop(0))
            if xr: a(xr.pop(0))
            if i == BP:
                f0, f1 = cfg.get('f0', BP), cfg.get('f1', 0)
                if len(fill) > 16 - f0: f0 = BP
                pos = [f0 + (k * (f1 - f0)) // max(len(fill) - 1, 1) for k in range(len(fill))] if f1 else range(BP + (BP & 1), 16, 2)
            AP = cfg.get('ap', 0)
            if AP and fill and i in (cfg.get('ap0', BP), AP):
                if i < AP and st in (0, FS + 1): a(f"s_cmp_lt_u32 s88, 4\ns_cselect_b64 vcc, {'0, -1' if cfg.get('apx') else '-1, 0'}\ns_nop 0")
                L = a.label('ap')
                a(f"s_cbranch_vcc{'z' if i < AP else 'nz'} {L}")
                for x in fill: a(x)
                a(f"{L}:")
                if i == AP: fill = []
            if not AP and fill and i in pos: a(fill.pop(0))
            for _ in range(3 if i >= BP else 5):
                if sv: a(sv.pop(0))
        assert not fill and not sv and not rd and not xr
    if cfg.get('w2h', 0): warm_hops(a, 'wp', 4, w0, cfg.get('w2h', 0))
    if cfg.get('sp', 0): a("s_setprio 0")
    stamp(a, cfg, 9)
    late = [x for j in range(JL, 14) for x in ldw(j)]
    LP = cfg.get('p2_lp', 1)
    for b in range(4):
        if b == cfg.get('p2_lb', 9): a("s_waitcnt lgkmcnt(0)\ns_barrier")
        def lw():
            for _ in range(LP):
                if late and (b >= cfg.get('p2_lb', 9) or len(late) > 2): a(late.pop(0))
        c = AC + 16 * b; km = v(K0 + 4 * b, 2); kk = v(K0 + 4 * b + 2, 2); t = EP + 8 * (b & 1); o = EP + 16 + 4 * b
        lw()
        P = range(4)
        for p in range(8): a(f"v_pk_fma_f32 {v(c+2*p,2)}, {v(CS+2*p,2)}, {km}, {v(c+2*p,2)} op_sel_hi:[1,0,1] neg_lo:[0,1,0] neg_hi:[0,1,0]")
        for p in P: a(f"v_pk_mul_f32 {v(t+2*p,2)}, {v(c+2*p,2)}, {v(c+2*p,2)}")
        lw()
        for p in P: a(f"v_pk_fma_f32 {v(t+2*p,2)}, {v(t+2*p,2)}, {kk}, {kk} op_sel:[0,1,0] op_sel_hi:[1,1,0]")
        for p in P: a(f"v_pk_mul_f32 {v(t+2*p,2)}, {v(t+2*p,2)}, {v(c+2*p,2)}")
        lw()
        for p in P: a(f"v_exp_f32 v{t+2*p}, v{t+2*p}\nv_exp_f32 v{t+2*p+1}, v{t+2*p+1}\nv_pk_mul_f32 {v(c+2*p,2)}, {v(c+2*p,2)}, {v(c+8+2*p,2)}")
        for p in P: a(f"v_pk_fma_f32 {v(t+2*p,2)}, {v(t+2*p,2)}, {km}, {km} op_sel:[0,1,1] op_sel_hi:[1,1,1]")
        for p in range(8): a(f"v_rcp_f32 v{t+p}, v{t+p}")
        lw()
        for p in P: a(f"v_pk_mul_f32 {v(c+2*p,2)}, {v(c+2*p,2)}, {v(t+2*p,2)}")
        for p in P: a(f"v_cvt_pk_bf16_f32 v{o+p}, v{c+2*p}, v{c+2*p+1}")
        a(f"buffer_store_dwordx4 {v(o,4)}, v{253+(b&1)}, {s(SO,4)}, s{80+b} offen {ST}")
    stamp(a, cfg, 10)
    def tail():
        K = a.label('noarr')
        a(f"s_waitcnt vmcnt(0) lgkmcnt(0)\ns_barrier\ns_cmp_lg_u32 s88, 0\ns_cbranch_scc1 {K}")
        flag_set(a, cfg, 8, 's79')
        if cfg.get('gate', 0):
            a(f"s_and_b32 s98, s79, 15\ns_cbranch_scc1 {K}\ns_add_u32 s98, s79, 14")
            flag_set(a, cfg, 8, 's98')
        a(f"{K}:")
        for x in late: a(x)
    if cfg.get('oldtail', 1): tail(); return None
    return tail

P3_LDS = 163840
P3_VGPR = 216
SLOT = [('H', 3), ('G', 4), ('G', 5), ('H', 2), ('G', 0), ('G', 1), ('H', 0), ('G', 2), ('G', 3), ('H', 1)]
def slot(j, alt=0):
    k, i = SLOT[j + 1 if alt else max(j - 3, 0) % 10]
    if j < 2 and not alt: k, i = 'H', j + 1
    return (0, i * 8192) if k == 'G' else (1, i * 16384)
def ldw(j, alt=0):
    k, o = slot(j, alt)
    return [f"s_add_u32 m0, {('s31', 's3')[k]}, {o}\ns_nop 0\nbuffer_load_dwordx4 v248, s[52:55], s30 offen lds",
            f"buffer_load_dwordx4 v249, s[52:55], s30 offen offset:1024 lds\ns_add_u32 s30, s30, 32768"]
def dtmap(cfg, r):
    d = cfg.get('dtx', 8)
    if d == 8: return f"s_lshr_b32 s98, s{WD}, 7\ns_sub_u32 {r}, {r}, s98\ns_add_u32 {r}, {r}, 4\ns_and_b32 {r}, {r}, 7"
    if d == 9: return f"s_add_u32 {r}, {r}, s2\ns_and_b32 {r}, {r}, 7"
    return f"s_xor_b32 {r}, {r}, {d}" if d else ''
def p3_pre(a, cfg):
    a(f"""v_lshrrev_b32 v3, 3, v2          ; row
    v_bfe_u32 v248, v2, 1, 2
    v_lshrrev_b32 v249, 4, v2
    v_xor_b32 v248, v248, v249
    v_lshlrev_b32 v248, 5, v248
    v_and_b32 v249, 1, v2
    v_lshl_add_u32 v248, v249, 4, v248
    v_lshl_add_u32 v248, v3, 10, v248
    v_add_u32 v249, 7168, v248
    s_mul_i32 s30, s67, {14*32768}
    s_lshl_b32 s3, s66, 14
    s_add_u32 s30, s30, s3
    s_lshr_b32 s3, s2, 5
    {dtmap(cfg, 's3')}
    s_lshl_b32 s3, s3, 7
    s_add_u32 s30, s30, s3
    s_lshl_b32 s3, s88, 11
    s_lshr_b32 s31, s88, 2
    s_mul_i32 s31, s31, {49152-8192}
    s_add_u32 s31, s31, s3
    s_add_u32 s3, s3, {P2_H}""")
AA = 4
def p3_addr(a, AA=4, T=12):
    a(f"""v_lshrrev_b32 v3, 2, v2          ; row = 4g+r
    v_bfe_u32 v{T}, v2, 3, 2
    s_and_b32 s76, s88, 2            ; 2*dp
    v_xor_b32 v{T}, s76, v{T}
    v_lshlrev_b32 v{T}, 5, v{T}
    v_lshl_add_u32 v{T}, v3, 7, v{T}
    v_and_b32 v3, 3, v2
    v_lshl_add_u32 v{T}, v3, 3, v{T}
    s_and_b32 s76, s31, 0xfffff000
    v_add_u32 v{AA}, s76, v{T}
    s_and_b32 s76, s3, 0xfffff000
    v_add_u32 v{AA+4}, s76, v{T}""")
    for x in range(1, 4): a(f"v_xor_b32 v{AA+x}, {32*x}, v{AA}\nv_xor_b32 v{AA+4+x}, {32*x}, v{AA+4}")
def p3_fa(j): return (216, 232, 200, 56)[j] if j < 4 else 72 + 16 * (j & 1)
def p3_reads(j, AA=4, alt=0):
    k, o = slot(j, alt); f = p3_fa(j); r = []
    for x in range(4):
        r += [f"ds_read_b64_tr_b16 {v(f+4*x,2)}, v{AA+4*k+x} offset:{o}", f"ds_read_b64_tr_b16 {v(f+4*x+2,2)}, v{AA+4*k+x} offset:{o+2048}"]
    return r

def p3_body(a, cfg, tail):
    SG, SH, SO = 36, 40, 44
    VL = 14
    FA, AC, GF = 56, 24, 104
    a(f"""s_and_b32 s56, s2, 7
    s_and_b32 s58, s56, 3
    s_lshl_b32 s58, s58, 1
    s_lshr_b32 s56, s56, 2
    s_add_u32 s58, s58, s56
    s_lshl_b32 s58, s58, 2
    s_and_b32 s59, s57, 3
    s_add_u32 s58, s58, s59
    s_lshr_b32 s59, s57, 2           ; d tile (64)
    {dtmap(cfg, 's59')}
    s_and_b32 s61, s60, 1            ; th
    s_lshr_b32 s62, s60, 1           ; kq
    s_lshl_b32 s65, s58, 2
    s_lshl_b32 s66, s61, 1
    s_add_u32 s65, s65, s66
    s_lshr_b32 s66, s62, 1
    s_add_u32 s65, s65, s66
    s_xor_b32 s66, s65, 1
    s_mul_i32 s67, s62, 14
    s_mul_i32 s68, s65, 56
    s_mul_i32 s69, s66, 56
    s_add_u32 s68, s68, s67
    s_add_u32 s69, s69, s67
    s_lshl_b32 s68, s68, 10
    s_lshl_b32 s69, s69, 10
    s_and_b32 s70, s62, 1            ; dp""")
    srd(a, SG, WS, 23 << 20, add=WS_G)
    g_off(a, cfg, 's62', 's65')
    def ldg(j):
        r = [f"buffer_load_dwordx4 {v(GF+8*(j%12)+4*b,4)}, v{253+b}, {s(SG,4)}, s{68+b} offen offset:{1024*(j&3)} {LD}" for b in range(2)]
        if j & 3 == 3: r[1] += "\ns_add_u32 s68, s68, 4096\ns_add_u32 s69, s69, 4096"
        return r
    srd(a, SH, WS, 2 << 20, add=WS_HT); srd(a, SO, OUT, 2 << 20)
    a(f"""v_lshrrev_b32 v3, 1, v2
    s_and_b32 s71, s65, 7
    v_xor_b32 v12, s71, v3
    v_and_b32 v12, 7, v12
    v_lshlrev_b32 v12, 5, v12
    v_lshl_add_u32 v12, v3, 8, v12
    v_and_b32 v3, 1, v2
    v_lshl_add_u32 v20, v3, 4, v12
    s_lshr_b32 s71, s65, 3
    s_lshl_b32 s71, s71, 17
    s_lshl_b32 s72, s59, 1
    s_add_u32 s72, s72, s70          ; d/32
    s_lshl_b32 s73, s72, 13
    s_add_u32 s71, s71, s73
    s_lshl_b32 s73, s60, 10
    v_lshl_add_u32 v21, v2, 3, s73
    s_lshl_b32 s74, s60, 11
    s_add_u32 s74, s74, 32768
    v_add_u32 v22, s74, v{VL}
    v_and_b32 v3, 15, v2
    v_lshlrev_b32 v3, 10, v3
    v_bfe_u32 v12, v2, 4, 1
    v_lshl_add_u32 v3, v12, 5, v3
    v_lshrrev_b32 v12, 5, v2
    v_lshl_add_u32 v23, v12, 4, v3
    s_lshl_b32 s75, s65, 14
    s_lshl_b32 s72, s72, 6
    s_add_u32 s75, s75, s72""")
    reads = p3_reads
    def mfmas(j):
        f = p3_fa(j)
        return [f"v_mfma_f32_16x16x32_bf16 {v(AC+16*b+4*x,4)}, {v(f+4*x,4)}, {v(GF+8*(j%12)+4*b,4)}, {v(AC+16*b+4*x,4) if j else 0}"
                for x in range(4) for b in range(2)]
    if tail:
        a("s_cmp_ge_u32 s57, 28\ns_cbranch_scc1 L_notail"); tail(); a("L_notail:")
    K = a.label('nopoll')
    a(f"s_cmp_lg_u32 s88, {cfg.get('pw', 0)}\ns_cbranch_scc1 {K}\ns_lshr_b32 s76, s58, 1\ns_lshl_b32 s76, s76, 4")
    if cfg.get('gate', 0):
        a(f"s_cmp_lt_u32 s57, 28\ns_cbranch_scc1 L_nogate\ns_add_u32 s90, s76, 14\ns_mul_i32 s90, s90, {cfg['LS']}")
        spin(a, f"buffer_load_dword v251, off, {s(SY,4)}, s90 offset:32 sc1", f"v_cmp_ne_u32 vcc, {TAG}, v251")
        a("L_nogate:")
    poll(a, cfg, 8, one='s76')
    a(f"{K}:\ns_barrier")
    stamp(a, cfg, 11)
    ops = []
    def issue(name, l):
        ops.extend([name] * len(l)); return l
    def need(*names):
        last = max([i for i, o in enumerate(ops) if o in names] + [-1])
        return len(ops) - 1 - last
    D = cfg.get('p3d', 4)
    for j in range(D):
        for x in issue(f'g{j}', ldg(j)): a(x)
    for j in range(14):
        if j < 13:
            a(f"s_waitcnt vmcnt({need(f'g{j}')}) lgkmcnt(0)")
            if j == 0: stamp(a, cfg, 12)
            ex = issue(f'g{j+D}', ldg(j+D)) if j + D < 14 else []
            if j == 7:
                a("s_barrier")
                ex += issue('h', [f"s_mov_b32 m0, s73\ns_nop 0\nbuffer_load_dwordx4 v20, {s(SH,4)}, s71 offen {LD} lds"])
            weave(a, mfmas(j), ex + (reads(j + 1) if j >= 3 else []), per=2)
        else:
            a(f"s_waitcnt vmcnt(0) lgkmcnt(0)")
            m = mfmas(j)
            m = [m[i] for i in (5, 7, 1, 3, 4, 6, 0, 2)]
            fill = [f"ds_read_b64_tr_b16 v[{FA}:{FA+1}], v21", f"ds_read_b64_tr_b16 v[{FA+2}:{FA+3}], v21 offset:512"]
            for i in (1, 2, 3):
                fill.append(f"s_xor_b32 s76, s60, {2*i}\ns_lshl_b32 s76, s76, 11\ns_add_u32 s76, s76, {49152*(i-1)+32768}\nv_add_u32 v{AA+i}, s76, v{VL}")
            weave(a, m, fill)
    stamp(a, cfg, 13)
    a("s_nop 1")
    for i in (3, 2, 1):
        if i == 1: a("s_nop 3")
        a(f"ds_write_b128 v{AA+i}, {v(AC+8*i,4)}\nds_write_b128 v{AA+i}, {v(AC+8*i+4,4)} offset:1024")
    a("s_mov_b32 s70, 0xffff0000\nv_add_u32 v12, 98304, v22\ns_waitcnt lgkmcnt(6)")
    for i in range(4):
        a(f"v_lshlrev_b32 v{FA+8+2*i}, 16, v{FA+i}\nv_and_b32 v{FA+9+2*i}, s70, v{FA+i}")
    a("s_waitcnt lgkmcnt(0)\ns_barrier")
    for i in range(6): a(f"ds_read_b128 {v(GF+4*i,4)}, v{22 if i < 4 else 12} offset:{1024*(i&1) + 49152*((i>>1)&1)}")
    for i in range(3):
        a(f"s_waitcnt lgkmcnt({4-2*i})")
        for p in range(4): a(f"v_pk_add_f32 {v(AC+2*p,2)}, {v(AC+2*p,2)}, {v(GF+8*i+2*p,2)}")
    for p in range(4): a(f"v_cvt_pk_bf16_f32 v{FA+p}, v{AC+2*p}, v{AC+2*p+1}")
    for p in range(4):
        a(f"v_lshlrev_b32 v{AC+2*p}, 16, v{FA+p}\nv_and_b32 v{AC+2*p+1}, s70, v{FA+p}")
    for p in range(4): a(f"v_pk_add_f32 {v(AC+2*p,2)}, {v(AC+2*p,2)}, {v(FA+8+2*p,2)}")
    for p in range(4): a(f"v_cvt_pk_bf16_f32 v{FA+p}, v{AC+2*p}, v{AC+2*p+1}")
    a(f"""s_nop 1
    v_permlane16_swap_b32 v{FA}, v{FA+2}
    v_permlane16_swap_b32 v{FA+1}, v{FA+3}
    buffer_store_dwordx4 {v(FA,4)}, v23, {s(SO,4)}, s75 offen {cfg.get('ost','')}""")

def spare_body(a, cfg):
    K = a.label('done'); CSJ = a.label('csj')
    a(f"""s_cmp_ge_u32 s57, 30
    s_cbranch_scc1 {CSJ}
    s_and_b32 s61, s2, 3
    s_lshl_b32 s61, s61, 2
    s_bfe_u32 s62, s2, 0x10002
    s_lshl_b32 s62, s62, 1
    s_add_u32 s61, s61, s62
    s_add_u32 s61, s61, s57
    s_sub_u32 s61, s61, 28           ; tb
    s_lshl_b32 s62, s61, 17
    s_add_u32 s62, s62, {WS_HT}""")
    srd(a, 32, WS, 131072, add='s62')
    for st in range(16):
        a(f"s_add_u32 m0, s63, {st*8192}\ns_mov_b32 s64, {st*8192}\nbuffer_load_dwordx4 v12, s[32:35], s64 offen {LD} lds")
    a(f"""s_xor_b32 s62, s68, s88
    s_lshl_b32 s62, s62, 5
    v_xor_b32 v4, s62, v4
    v_subrev_u32 v4, {P2_H}, v4
    v_add_u32 v5, 0x10000, v4
    v_mov_b32 v16, 0
    v_mov_b32 v17, 0
    v_mov_b32 v20, 0x3f803f80
    s_lshl_b32 s62, s61, 9
    s_lshl_b32 s64, s88, 6
    s_add_u32 s62, s62, s64
    s_add_u32 s62, s62, 16384
    v_lshlrev_b32 v7, 2, v2
    v_and_b32 v8, 0x30, v2
    v_lshl_add_u32 v7, v8, 12, v7""")
    for h in range(2):
        a(f"s_waitcnt vmcnt({8-8*h})\ns_barrier")
        for st in range(8):
            a(f"ds_read_b64_tr_b16 {v(40+4*st,2)}, v{4+h} offset:{st*8192}\nds_read_b64_tr_b16 {v(42+4*st,2)}, v{4+h} offset:{st*8192+4096}")
        for r in range(32):
            if r % 8 == 0: a(f"s_waitcnt lgkmcnt({12-r//2})")
            a(f"v_dot2c_f32_bf16 v16, v{40+r}, v20\nv_dot2c_f32_bf16 v17, v{40+r}, v{40+r}")
    a("s_nop 2")
    for sw in (16, 32):
        a(f"""v_mov_b32 v18, v16
        v_mov_b32 v19, v17
        s_nop 1
        v_permlane{sw}_swap_b32 v16, v18
        v_permlane{sw}_swap_b32 v17, v19
        v_add_f32 v16, v16, v18
        v_add_f32 v17, v17, v19""")
    bf16_round_stats(a, 16, 17, 18, 19, 20, 512)
    a(f"""buffer_store_dword v18, v7, s[48:51], s62 offen {ST}
    s_add_u32 s72, s61, 32
    s_waitcnt vmcnt(0)
    s_barrier
    s_cmp_lg_u32 s88, 0
    s_cbranch_scc1 {K}""")
    flag_set(a, cfg, 9, 's72')
    a(f"""s_branch {K}
    {CSJ}:
    s_and_b32 s61, s2, 3
    s_lshl_b32 s61, s61, 1
    s_add_u32 s61, s61, s57
    s_sub_u32 s61, s61, 30
    s_cmp_ge_u32 s61, 7
    s_cbranch_scc1 {K}
    s_bfe_u32 s72, s2, 0x10002
    s_mul_i32 s72, s72, 7
    s_add_u32 s72, s72, s61          ; ft
    s_lshl_b32 s61, s72, 8
    s_mul_i32 s62, s88, {4*3584}
    s_add_u32 s61, s61, s62
    v_lshrrev_b32 v3, 4, v2
    v_mul_u32_u24 v3, 3584, v3
    v_and_b32 v7, 15, v2
    v_lshl_add_u32 v3, v7, 4, v3""")
    order = list(range(NS, 16)) + list(range(NS))
    for j in order:
        a(f"s_add_u32 s62, s61, {j*32*3584}\nbuffer_load_dwordx4 {v(40+8*j,4)}, v3, s[36:39], s62 offen\nbuffer_load_dwordx4 {v(44+8*j,4)}, v3, s[40:43], s62 offen")
    a("""v_mov_b32 v9, 0x3f80
    v_and_b32 v8, 1, v2
    v_lshlrev_b32 v8, 4, v8
    v_lshlrev_b32 v9, v8, v9
    v_bfe_u32 v8, v2, 1, 2""")
    for j in range(4):
        a(f"v_cmp_eq_u32 vcc, {j}, v8\ns_nop 1\nv_cndmask_b32 v{16+j}, 0, v9, vcc")
    a(f"""v_lshlrev_b32 v7, 5, v7
    v_and_b32 v8, 16, v2
    v_add3_u32 v7, v7, v8, s63""")
    for i, j in enumerate(order):
        a(f"s_waitcnt vmcnt({30-2*i})")
        for m in range(2): a(f"v_mfma_f32_16x16x32_bf16 {v(20+4*m,4)}, v[16:19], {v(40+8*j+4*m,4)}, {v(20+4*m,4) if i else 0}")
    a(f"""s_nop 7
    ds_write_b128 v7, v[20:23]
    ds_write_b128 v7, v[24:27] offset:512
    s_waitcnt lgkmcnt(0)
    s_barrier""")
    for w in range(8): a(f"ds_read_b128 {v(40+4*w,4)}, v14 offset:{1024*w}")
    a(f"""v_lshrrev_b32 v7, 5, v2
    v_mul_u32_u24 v7, {1792*4-512}, v7
    v_add_u32 v7, v7, v14
    s_lshl_b32 s62, s72, 9
    s_waitcnt lgkmcnt(0)
    s_barrier
    s_cmp_lg_u32 s88, 0
    s_cbranch_scc1 {K}""")
    for w in range(1, 8): a(f"v_pk_add_f32 v[40:41], v[40:41], {v(40+4*w,2)}\nv_pk_add_f32 v[42:43], v[42:43], {v(42+4*w,2)}")
    a(f"buffer_store_dwordx4 v[40:43], v7, s[48:51], s62 offen {ST}\ns_waitcnt vmcnt(0)")
    flag_set(a, cfg, 9, 's72')
    a(f"{K}:")
    a("s_sub_u32 s30, s30, 65536")
    for j in range(4):
        for x in ldw(j, 1): a(x)
    p3_addr(a)
    a("s_waitcnt vmcnt(0)\ns_barrier")
    for j in range(4):
        for x in p3_reads(j, 4, 1): a(x)
    a("s_waitcnt lgkmcnt(0)\ns_barrier")
    for j in range(4, 14):
        for x in ldw(j): a(x)
    a("s_waitcnt vmcnt(0)")
```
